```python
import torch

def _softmax(x, axis=-1):
    return torch.softmax(x, dim=axis)

def _gelu(x):
    return torch.nn.functional.gelu(x, approximate='tanh')

def _silu(x):
    return torch.nn.functional.silu(x)

def _sigmoid(x):
    return torch.sigmoid(x)

def _layernorm(x, axis=-1, eps=1e-05):
    m = x.mean(dim=axis, keepdim=True)
    v = x.var(dim=axis, keepdim=True, unbiased=False)
    return (x - m) / torch.sqrt(v + eps)

def _scatter_add(tgt, idx, src, axis=0):
    return tgt.clone().index_add_(axis, idx, src)

def _segment_sum(src, seg, n):
    out = torch.zeros((n,) + src.shape[1:], dtype=src.dtype)
    return out.index_add_(0, seg, src)

def _pad(x, pw):
    flat = tuple((v for pair in reversed(pw) for v in pair))
    return torch.nn.functional.pad(x, flat)
kernel_name = 'adaLN_cond__spectral_gfnet__dense_activation_mish__prompt'

def setup_inputs():

    _w = lambda a: (lambda t: t.to(torch.bfloat16) if t.is_floating_point() else t)(torch.as_tensor(a))

    def _A_setup():
        B, S, D = (1, 2048, 512)
        Df = D // 2 + 1
        return {'x': _w((lambda *s: torch.randn(*s, dtype=torch.bfloat16) * 0.05)(B, S, D)), 'w_r': _w((lambda *s: torch.randn(*s, dtype=torch.bfloat16) * 1.6)(S, Df) * 0.02), 'w_i': _w((lambda *s: torch.randn(*s, dtype=torch.bfloat16) * 1.6)(S, Df) * 0.02)}
    _A_in = _A_setup()

    def _B_setup():
        B, S, D, F = (1, 2048, 512, 1376)
        return {'x': _w((lambda *s: torch.randn(*s, dtype=torch.bfloat16) * 0.05)(B, S, D)), 'w1': _w((lambda *s: torch.randn(*s, dtype=torch.bfloat16) * 0.8)(D, F) * D ** (-0.5)), 'b1': _w((lambda *s: torch.randn(*s, dtype=torch.bfloat16) * 0.4)(F)), 'w2': _w((lambda *s: torch.randn(*s, dtype=torch.bfloat16) * 0.2)(F, D) * F ** (-0.5))}
    _B_in = _B_setup()
    return {'A_x': _A_in['x'], 'A_w_r': _A_in['w_r'], 'A_w_i': _A_in['w_i'], 'B_x': _B_in['x'], 'B_w1': _B_in['w1'], 'B_b1': _B_in['b1'], 'B_w2': _B_in['w2'], 'c': _w((lambda *s: torch.randn(*s, dtype=torch.bfloat16) * 0.2)(1, 512) * 8.0), 'w_mod': _w((lambda *s: torch.randn(*s, dtype=torch.bfloat16) * 0.2)(512, 6 * 512) * 512 ** (-0.5) * 8.0)}

def reference(A_x, A_w_r, A_w_i, B_x, B_w1, B_b1, B_w2, c, w_mod):

    def _A_ref(x, w_r, w_i):
        B, S, D = x.shape
        X = (lambda x, axes=(-2, -1): torch.fft.rfft2(x.float(), dim=axes))(x, axes=(-2, -1))
        W = w_r + 1j * w_i
        X = X * W
        y = (lambda x, s, axes=(-2, -1): torch.fft.irfft2(x, s=s, dim=axes).to(torch.bfloat16))(X, (S, D), axes=(-2, -1))
        return y

    def _B_ref(x, w1, b1, w2):
        h = torch.einsum('bsd,df->bsf', x, w1) + b1
        sp = torch.log1p(torch.exp(-torch.abs(h))) + torch.where(h > 0, h, torch.zeros_like(h))
        act = h * torch.tanh(sp)
        return torch.einsum('bsf,fd->bsd', act, w2)
    x = A_x
    mod = (_silu(c) @ w_mod).reshape(c.shape[0], 6, 1, -1)
    sa, ca, ga, sb, cb, gb = (mod[:, 0].clone(), mod[:, 1].clone(), mod[:, 2].clone(), mod[:, 3].clone(), mod[:, 4].clone(), mod[:, 5].clone())
    h = _layernorm(x, axis=-1) * (1 + ca) + sa
    x = x + ga * _A_ref(h, A_w_r, A_w_i)
    h = _layernorm(x, axis=-1) * (1 + cb) + sb
    x = x + gb * _B_ref(h, B_w1, B_b1, B_w2)
    return x
```

```python
import re

def v(i, n=1): return f"v{i}" if n == 1 else f"v[{i}:{i+n-1}]"
def a(i, n=1): return f"a{i}" if n == 1 else f"a[{i}:{i+n-1}]"
def s(i, n=1): return f"s{i}" if n == 1 else f"s[{i}:{i+n-1}]"

_REG = re.compile(r"^-?(?:abs\()?([vas])(?:(\d+)|\[(\d+):(\d+)\])\)?$")
TRANS = ("v_exp_f32", "v_log_f32", "v_rcp_f32", "v_rsq_f32", "v_sqrt_f32", "v_sin_f32", "v_cos_f32")

def regs_of(tok):
    tok = tok.strip()
    if tok in ("vcc", "vcc_lo", "vcc_hi"): return {("s", 106), ("s", 107)}
    if tok == "exec": return {("s", 126), ("s", 127)}
    if tok == "m0": return {("s", 124)}
    m = _REG.match(tok)
    if not m: return set()
    k = m.group(1)
    if m.group(2) is not None: return {(k, int(m.group(2)))}
    return {(k, i) for i in range(int(m.group(3)), int(m.group(4)) + 1)}

class Ins:
    def __init__(self, text, cond=False):
        self.text = text
        self.cond = cond
        body = text.split(";")[0].strip()
        self.label = body.endswith(":")
        self.directive = body.startswith(".")
        self.op = body.split()[0] if body else ""
        rest = body[len(self.op):].strip()
        toks = []
        depth = 0; cur = ""
        for ch in rest:
            if ch == "[": depth += 1
            if ch == "]": depth -= 1
            if ch == "," and depth == 0: toks.append(cur); cur = ""
            else: cur += ch
        if cur.strip(): toks.append(cur)
        ops = []; mods = ""
        for i, t in enumerate(toks):
            t = t.strip()
            if i == len(toks) - 1:
                p = t.split(None, 1)
                ops.append(p[0]); mods = p[1] if len(p) > 1 else ""
            else: ops.append(t)
        self.ops = ops; self.mods = mods
        self.classify()

    def classify(self):
        op, ops, mods = self.op, self.ops, self.mods
        R = [regs_of(t) for t in ops]
        self.kind = "other"; self.w = set(); self.r = set()
        self.vm = self.lg = False; self.load_dst = set(); self.store_data = set(); self.passes = 0
        allr = set().union(*R) if R else set()
        if self.label or self.directive or not op: self.kind = "none"; return
        if op.startswith("v_mfma"):
            self.kind = "mfma"; self.w = R[0]; self.A = R[1]; self.B = R[2]; self.C = R[3]; self.r = R[1] | R[2] | R[3]
            self.passes = 8 if "32x32" in op else 4
        elif op.startswith(("buffer_", "global_")):
            self.kind = "vmem"; self.vm = True
            lds = " lds" in (" " + mods) or "_lds_" in op
            if "load" in op and not lds:
                self.w = R[0]; self.load_dst = R[0]; self.r = set().union(*R[1:])
            elif lds:
                self.r = allr | {("s", 124)}; self.dma = True
            elif "atomic" in op:
                self.r = allr
                if "sc0" in mods: self.w = R[0]; self.load_dst = R[0]
            elif op.startswith("buffer_store"):
                self.r = allr
                if "x3" in op or "x4" in op: self.store_data = R[0]
            elif op.startswith("global_store"):
                self.r = allr
                if "x3" in op or "x4" in op: self.store_data = R[1]
            else: self.r = allr
        elif op.startswith("ds_"):
            self.kind = "ds"; self.lg = True
            if op.startswith(("ds_read", "ds_bpermute", "ds_permute", "ds_swizzle")) or "_rtn" in op:
                self.w = R[0]; self.load_dst = R[0]; self.r = set().union(*R[1:])
            else: self.r = allr
        elif op.startswith(("s_load", "s_buffer_load", "s_memtime", "s_memrealtime")):
            self.kind = "smem"; self.lg = True; self.w = R[0]; self.load_dst = R[0]; self.r = set().union(*R[1:]) if len(R) > 1 else set()
        elif op.startswith("v_"):
            self.kind = "valu"
            self.trans = op.split("_e32")[0].split("_e64")[0] in TRANS
            self.dpp = "_dpp" in op
            self.perml = op.startswith("v_permlane")
            self.rdlane = op.startswith(("v_readlane", "v_readfirstlane"))
            if op.startswith("v_cmp"):
                self.w = R[0]; self.r = set().union(*R[1:])
                if op.startswith("v_cmpx"): self.w = self.w | regs_of("exec")
            elif op.startswith(("v_permlane16_swap", "v_permlane32_swap", "v_swap")):
                self.w = R[0] | R[1]; self.r = R[0] | R[1]
            elif re.match(r"v_(add|sub|subrev|addc|subb)_co", op):
                self.w = R[0] | R[1]; self.r = set().union(*R[2:])
            elif op == "v_nop": pass
            else:
                self.w = R[0]; self.r = set().union(*R[1:]) if len(R) > 1 else set()
                if op.startswith(("v_fmac", "v_dot2c", "v_pk_fmac", "v_writelane")) or self.dpp or "UNUSED_PRESERVE" in mods:
                    self.r = self.r | R[0]
                if op.startswith("v_cndmask") and len(ops) == 3: self.r |= regs_of("vcc")
        elif op.startswith("s_"):
            self.kind = "salu"
            if op.startswith(("s_cmp", "s_cbranch", "s_branch", "s_waitcnt", "s_barrier", "s_nop", "s_sleep", "s_endpgm", "s_setprio", "s_setpc", "s_bitcmp")):
                self.r = allr
                if op.startswith("s_cbranch_vcc"): self.r = regs_of("vcc")
                if op.startswith("s_cbranch_exec"): self.r = regs_of("exec")
            else:
                self.w = R[0]; self.r = set().union(*R[1:]) if len(R) > 1 else set()
                if "saveexec" in op: self.w = self.w | regs_of("exec"); self.r = self.r | regs_of("exec")
                if op.startswith(("s_addk", "s_mulk", "s_cmov")): self.r |= R[0]

def _vec(rs): return {x for x in rs if x[0] in "va"}
def _sc(rs): return {x for x in rs if x[0] == "s"}

def need_states(p, c):
    n = 0
    if p.kind == "valu":
        pw = _vec(p.w); ps = _sc(p.w)
        if c.kind == "mfma" and pw & c.r: n = max(n, 2)
        if c.kind == "valu":
            if c.dpp and pw & c.r: n = max(n, 2)
            if c.perml and pw & c.r: n = max(n, 2)
            if c.rdlane and pw & c.r: n = max(n, 1)
            if p.trans and pw & c.r: n = max(n, 1)
            if ("sdwa" in p.op or "op_sel" in p.mods and not p.op.startswith("v_pk")) and pw & (c.r | c.w): n = max(n, 1)
            if ps & c.r: n = max(n, 4 if c.rdlane or c.op.startswith("v_writelane") else 2)
            if ("s", 126) in ps: n = max(n, 5 if c.dpp else 4 if (c.rdlane or c.perml) else 0)
        if c.kind == "mfma" and ("s", 126) in ps: n = max(n, 4)
        if c.kind == "vmem" and ps & c.r: n = max(n, 5)
        if c.kind in ("salu", "smem") and ps & c.r: n = max(n, 2)
    elif p.kind == "mfma":
        big = p.passes == 8
        if c.kind == "mfma":
            if p.w & (c.A | c.B): n = max(n, 12 if big else 8)
            if p.w & c.C and not (p.w == c.C and p.passes == c.passes): n = max(n, 10 if big else 6)
            if p.w & c.w and not (p.w == c.C and p.passes == c.passes): n = max(n, 10 if big else 6)
        elif c.kind in ("valu", "vmem", "ds"):
            if p.w & (c.r | c.w): n = max(n, 12 if big else 8)
            if c.kind == "valu" and p.C & c.w: n = max(n, 7 if big else 3)
    elif p.kind == "vmem":
        if p.store_data & c.w: n = max(n, 2)
    elif p.kind == "salu":
        if ("s", 124) in p.w and (getattr(c, "dma", False) or "addtid" in c.op): n = max(n, 1)
    return n

class Asm:
    def __init__(self):
        self.items = []; self.cond = 0; self.ncond = 0
    def __call__(self, text):
        for line in text.split("\n"):
            if line.split(";")[0].strip(): self.items.append(Ins(line.strip(), self.cond))
    def raw(self, text):
        i = Ins(".raw"); i.text = text; self.items.append(i)
    def begin_cond(self, name=None):
        assert self.cond == 0
        self.ncond += 1; self.cond = name or self.ncond
    def end_cond(self): self.cond = 0
    def reset_state(self):
        i = Ins(".reset"); i.text = ""; i.reset = True; self.items.append(i)

    def finalize(self):
        out = []
        vmq = []; lgq = []
        def slots(i):
            if i.op == "s_nop": return int(i.ops[0], 0) + 1
            return 0 if i.kind == "none" else 1
        def sure(x, c): return (not x.cond) or x.cond == c
        def drop(q, n, c):
            if c:
                keep = list(q)
                lim = -1
                for j in range(len(q) - 1, -1, -1):
                    if sum(1 for x in q[j + 1:] if sure(x, c)) >= n: lim = j; break
                for j in range(lim + 1):
                    if q[j].cond == c: q[j].done = True
                    else: q[j].done_in = c
                q[:] = [x for x in keep if not getattr(x, "done", False)]
                return
            for j in range(len(q) - 1, -1, -1):
                if sum(1 for x in q[j + 1:] if not x.cond) >= n:
                    del q[:j + 1]; return
        for ins in self.items:
            if getattr(ins, "reset", False):
                vmq = []; lgq = []; out.append(ins); continue
            if ins.kind == "none": out.append(ins); continue
            if ins.op == "s_waitcnt":
                m = re.search(r"vmcnt\((\d+)\)", ins.text)
                if m: drop(vmq, int(m.group(1)), ins.cond)
                m = re.search(r"lgkmcnt\((\d+)\)", ins.text)
                if m:
                    n = int(m.group(1))
                    if n == 0 or not any(x.kind == "smem" for x in lgq): drop(lgq, n, ins.cond)
                out.append(ins); continue
            touched = ins.r | ins.w
            wv = wl = None
            for j in range(len(vmq) - 1, -1, -1):
                if vmq[j].load_dst & touched and not (ins.cond and getattr(vmq[j], "done_in", 0) == ins.cond):
                    wv = sum(1 for x in vmq[j + 1:] if sure(x, ins.cond)); break
            for j in range(len(lgq) - 1, -1, -1):
                if lgq[j].load_dst & touched and not (ins.cond and getattr(lgq[j], "done_in", 0) == ins.cond):
                    wl = 0 if any(x.kind == "smem" for x in lgq) else sum(1 for x in lgq[j + 1:] if sure(x, ins.cond)); break
            if wv is not None or wl is not None:
                t = "s_waitcnt"
                if wv is not None:
                    wv = min(wv, 63); t += f" vmcnt({wv})"; drop(vmq, wv, ins.cond)
                if wl is not None:
                    wl = min(wl, 15); t += f" lgkmcnt({wl})"; drop(lgq, wl, ins.cond)
                out.append(Ins(t, ins.cond))
            dist = 0; need = 0
            for p in reversed(out):
                if dist >= 20: break
                if p.kind != "none":
                    n = need_states(p, ins)
                    need = max(need, n - dist)
                    if sure(p, ins.cond): dist += slots(p)
            while need > 0:
                k = min(need, 16); out.append(Ins(f"s_nop {k-1}", ins.cond)); need -= k
            out.append(ins)
            if ins.vm: vmq.append(ins)
            if ins.lg: lgq.append(ins)
        return "\n".join(("    " if i.kind != "none" else "") + i.text for i in out if i.text)

def kernel_desc(name, vgpr, accum, sgpr=96):
    return f""".section .rodata,"a"
.p2align 6
.amdhsa_kernel {name}
  .amdhsa_next_free_vgpr {vgpr}
  .amdhsa_next_free_sgpr {sgpr}
  .amdhsa_accum_offset {accum}
  .amdhsa_group_segment_fixed_size 0
  .amdhsa_kernarg_size 96
  .amdhsa_user_sgpr_count 2
  .amdhsa_user_sgpr_kernarg_segment_ptr 1
  .amdhsa_system_sgpr_workgroup_id_x 1
  .amdhsa_float_denorm_mode_32 3
.end_amdhsa_kernel
.text
"""
```

```python
import numpy as np, struct
from asmlib import *
import model

NAME = "adaLN_cond__spectral_gfnet__dense_activation_mish__prompt"
WS_MODP = 0x0
WS_X1 = 0x100000
WS_SIDE = 0x380000
WS_Z = 0x400000
WS_WP = 0x700000
WS_VP = 0x900000
WS_W1P = 0xA00000
WS_W2P = 0xC00000
WS_ACT = 0x1000000
WS_X1R = 0x1800000
WP_BYTES = 43 * 32 * 1024
OOB = 0x7FFFFF00

def fhex(x): return "0x%08x" % struct.unpack("<I", struct.pack("<f", float(x)))[0]
def bfbits(x): return (model.bf(np.asarray(x, np.float32)).view(np.uint32) >> 16).astype(np.uint32)

def table_F1():
    F1 = model.mat_F1(); T = np.zeros((2, 2, 64, 4), np.uint32)
    for vv in range(2):
        for c in range(2):
            for l in range(64):
                m, g = l & 15, l >> 4
                for i in range(4):
                    d1 = 4 * g + i
                    T[vv, c, l, i] = bfbits(F1[vv, d1, 0, m, c]) | (bfbits(F1[vv, d1, 1, m, c]) << 16)
    return T
def table_I1():
    I1 = model.mat_I1() * model.WSCALE; T = np.zeros((2, 2, 64, 4), np.uint32)
    for vv in range(2):
        for mt in range(2):
            for l in range(64):
                rho, g = l & 15, l >> 4
                d1, c = 8 * mt + (rho >> 1), rho & 1
                for r in range(4):
                    m = 4 * g + r
                    T[vv, mt, l, r] = bfbits(I1[vv, m, 0, d1, c]) | (bfbits(I1[vv, m, 1, d1, c]) << 16)
    return T
def emit_tables():
    t = np.concatenate([table_F1().ravel(), table_I1().ravel()])
    lines = [".p2align 8", ".type L_tables,@object", "L_tables:"]
    for i in range(0, len(t), 8):
        lines.append(".long " + ",".join("0x%08x" % x for x in t[i:i + 8]))
    lines.append(f".size L_tables, {4*len(t)}")
    return "\n".join(lines)
TAB_F1, TAB_I1 = 0, 4096

def srd(A, d, base, nbytes, off=0):
    if off:
        A(f"s_add_u32 {s(d)}, {s(base)}, {hex(off)}\ns_addc_u32 {s(d+1)}, {s(base+1)}, 0")
    else:
        A(f"s_mov_b32 {s(d)}, {s(base)}\ns_mov_b32 {s(d+1)}, {s(base+1)}")
    A(f"s_mov_b32 {s(d+2)}, {hex(nbytes)}\ns_mov_b32 {s(d+3)}, 0x20000")

def tables_ptr(A, d, tag):
    A(f"s_getpc_b64 {s(d,2)}")
    A(f"L_pc_{tag}:")
    A(f"s_add_u32 {s(d)}, {s(d)}, L_tables-L_pc_{tag}\ns_addc_u32 {s(d+1)}, {s(d+1)}, 0")

def prologue(A, name, nwg):
    A.raw(f".globl {name}\n.p2align 8\n.type {name},@function\n{name}:")
    A.reset_state()
    A(f"s_cmp_ge_u32 s2, {nwg}\ns_cbranch_scc1 L_end_{name}")

def epilogue(A, name):
    A(f"L_end_{name}:\ns_endpgm")

def unpack(A, lo, hi, src):
    A(f"v_lshlrev_b32 {v(lo)}, 16, {v(src)}\nv_and_b32 {v(hi)}, 0xffff0000, {v(src)}")

def gen_cs_frags(A, al, be, ks, dst_re, dst_im, tmp, sign):
    n = len(ks)
    for i0 in range(0, n, 4):
        idx = list(range(i0, min(n, i0 + 4)))
        for u, i in enumerate(idx):
            if ks[i] == 0: A(f"v_mov_b32 {v(tmp+3*u)}, {v(al)}")
            else: A(f"v_fmamk_f32 {v(tmp+3*u)}, {v(be)}, {fhex(ks[i])}, {v(al)}")
        for u, i in enumerate(idx):
            A(f"v_cos_f32 {v(tmp+3*u+1)}, {v(tmp+3*u)}\nv_sin_f32 {v(tmp+3*u+2)}, {v(tmp+3*u)}")
        for u, i in enumerate(idx):
            c, sn = v(tmp + 3 * u + 1), v(tmp + 3 * u + 2)
            if sign < 0:
                A(f"v_cvt_pk_bf16_f32 {v(dst_re[i])}, {c}, {sn}\nv_cvt_pk_bf16_f32 {v(dst_im[i])}, -{sn}, {c}")
            else:
                A(f"v_cvt_pk_bf16_f32 {v(dst_re[i])}, {c}, -{sn}\nv_cvt_pk_bf16_f32 {v(dst_im[i])}, {sn}, {c}")

def mfma32(A, d, x, y, c=None):
    A(f"v_mfma_f32_32x32x16_bf16 {d}, {x}, {y}, {c if c is not None else d}")
def mfma16(A, d, x, y, c=None):
    A(f"v_mfma_f32_16x16x32_bf16 {d}, {x}, {y}, {c if c is not None else d}")

def row_stats(A, X, T, lds_base, v_addr_w, v_addr_r, v_r, v_mr):
    A(f"v_pk_add_f32 {v(T,2)}, {v(X,2)}, {v(X+2,2)}\nv_pk_mul_f32 {v(T+2,2)}, {v(X,2)}, {v(X,2)}")
    A(f"v_pk_add_f32 {v(T+4,2)}, {v(X+4,2)}, {v(X+6,2)}\nv_pk_mul_f32 {v(T+6,2)}, {v(X+2,2)}, {v(X+2,2)}")
    A(f"v_pk_fma_f32 {v(T+2,2)}, {v(X+4,2)}, {v(X+4,2)}, {v(T+2,2)}\nv_pk_fma_f32 {v(T+6,2)}, {v(X+6,2)}, {v(X+6,2)}, {v(T+6,2)}")
    for i in range(8, 64, 4):
        A(f"v_pk_add_f32 {v(T,2)}, {v(T,2)}, {v(X+i,2)}\nv_pk_fma_f32 {v(T+2,2)}, {v(X+i,2)}, {v(X+i,2)}, {v(T+2,2)}")
        A(f"v_pk_add_f32 {v(T+4,2)}, {v(T+4,2)}, {v(X+i+2,2)}\nv_pk_fma_f32 {v(T+6,2)}, {v(X+i+2,2)}, {v(X+i+2,2)}, {v(T+6,2)}")
    A(f"v_pk_add_f32 {v(T,2)}, {v(T,2)}, {v(T+4,2)}\nv_pk_add_f32 {v(T+2,2)}, {v(T+2,2)}, {v(T+6,2)}")
    A(f"v_add_f32 {v(T)}, {v(T)}, {v(T+1)}\nv_add_f32 {v(T+1)}, {v(T+2)}, {v(T+3)}")
    A(f"ds_write_b64 {v(v_addr_w)}, {v(T,2)} offset:{lds_base}")
    A("s_waitcnt lgkmcnt(0)\ns_barrier")
    for i in range(2):
        A(f"ds_read_b128 {v(T+4*i,4)}, {v(v_addr_r)} offset:{lds_base+16*i}")
    P = T + 8
    for i in range(2):
        A(f"ds_read_b128 {v(P+4*i,4)}, {v(v_addr_r)} offset:{lds_base+32+16*i}")
    A(f"v_pk_add_f32 {v(T,2)}, {v(T,2)}, {v(T+2,2)}\nv_pk_add_f32 {v(T+4,2)}, {v(T+4,2)}, {v(T+6,2)}")
    A(f"v_pk_add_f32 {v(P,2)}, {v(P,2)}, {v(P+2,2)}\nv_pk_add_f32 {v(P+4,2)}, {v(P+4,2)}, {v(P+6,2)}")
    A(f"v_pk_add_f32 {v(T,2)}, {v(T,2)}, {v(T+4,2)}\nv_pk_add_f32 {v(P,2)}, {v(P,2)}, {v(P+4,2)}")
    A(f"v_pk_add_f32 {v(T,2)}, {v(T,2)}, {v(P,2)}")
    A(f"v_mul_f32 {v(T)}, {fhex(1/512)}, {v(T)}\nv_mul_f32 {v(T+1)}, {fhex(1/512)}, {v(T+1)}")
    A(f"v_fma_f32 {v(T+1)}, -{v(T)}, {v(T)}, {v(T+1)}")
    A(f"v_max_f32 {v(T+1)}, 0, {v(T+1)}\nv_add_f32 {v(T+1)}, {fhex(1e-5)}, {v(T+1)}")
    A(f"v_rsq_f32 {v(v_r)}, {v(T+1)}")
    A(f"v_mul_f32 {v(v_mr)}, -{v(T)}, {v(v_r)}")
```

```python
import numpy as np
S, D, F = 2048, 512, 1376

def bf(x):
    x = np.ascontiguousarray(x, dtype=np.float32)
    u = x.view(np.uint32)
    r = ((u + 0x7FFF + ((u >> 16) & 1)) >> 16).astype(np.uint32) << 16
    return r.view(np.float32).reshape(x.shape)

def kcol(g, m):
    if g == 0:
        return 32 * m if m < 8 else 32 * (m - 8) + 16
    return 32 * m + g if m < 8 else 512 - (32 * m + g)

def mat_F2():
    M = np.zeros((16, 32, 16, 2))
    for d1 in range(16):
        for d2 in range(32):
            d = d1 + 16 * d2
            M[d1, d2, 0, 0] = 1.0
            M[d1, d2, 0, 1] = (-1.0) ** d2
            for g in range(1, 16):
                a = 2 * np.pi * d * g / 512
                M[d1, d2, g, 0] = np.cos(a); M[d1, d2, g, 1] = -np.sin(a)
    return M

def mat_F1():
    M = np.zeros((2, 16, 2, 16, 2))
    for d1 in range(16):
        for m in range(16):
            a = 2 * np.pi * d1 * m / 16
            sg = 1.0 if m < 8 else -1.0
            M[1, d1, 0, m, 0] = np.cos(a); M[1, d1, 1, m, 0] = np.sin(a)
            M[1, d1, 0, m, 1] = -np.sin(a) * sg; M[1, d1, 1, m, 1] = np.cos(a) * sg
            if m == 0:
                M[0, d1, 0, 0, 0] = 1.0; M[0, d1, 0, 0, 1] = (-1.0) ** d1
            elif m < 8:
                M[0, d1, 0, m, 0] = np.cos(a); M[0, d1, 0, m, 1] = -np.sin(a)
            else:
                b = 2 * np.pi * d1 * (32 * (m - 8) + 16) / 512
                M[0, d1, 1, m, 0] = np.cos(b); M[0, d1, 1, m, 1] = -np.sin(b)
    return M

def mat_I1():
    M = np.zeros((2, 16, 2, 16, 2))
    for d1 in range(16):
        for m in range(16):
            a = 2 * np.pi * d1 * m / 16
            sg = 1.0 if m < 8 else -1.0
            M[1, m, 0, d1, 0] = np.cos(a); M[1, m, 1, d1, 0] = -np.sin(a) * sg
            M[1, m, 0, d1, 1] = np.sin(a); M[1, m, 1, d1, 1] = np.cos(a) * sg
            if m == 0:
                M[0, 0, 0, d1, 0] = 0.5; M[0, 0, 1, d1, 0] = 0.5 * (-1.0) ** d1
            elif m < 8:
                M[0, m, 0, d1, 0] = np.cos(a); M[0, m, 1, d1, 0] = -np.sin(a)
            else:
                b = 2 * np.pi * d1 * (32 * (m - 8) + 16) / 512
                M[0, m, 0, d1, 1] = np.cos(b); M[0, m, 1, d1, 1] = -np.sin(b)
    return M

def mat_I2():
    M = np.zeros((16, 16, 2, 32))
    for d1 in range(16):
        for d2 in range(32):
            d = d1 + 16 * d2
            M[d1, 0, 0, d2] = 1.0
            M[d1, 0, 1, d2] = (-1.0) ** d2
            for g in range(1, 16):
                a = 2 * np.pi * d * g / 512
                M[d1, g, 0, d2] = np.cos(a); M[d1, g, 1, d2] = -np.sin(a)
    return M

def cmat(E):
    R = np.zeros((E.shape[0], 2, E.shape[1], 2))
    R[:, 0, :, 0] = E.real; R[:, 0, :, 1] = -E.imag
    R[:, 1, :, 0] = E.imag; R[:, 1, :, 1] = E.real
    return R

WSCALE = 2.0 / (512.0 * 2048.0)

def ln(x, eps=1e-5):
    m = x.mean(-1, keepdims=True)
    v = np.maximum((x * x).mean(-1, keepdims=True) - m * m, 0)
    return (x - m) / np.sqrt(v + eps)

def pipeline(x, wr, wi, w1, b1, w2, c, wmod, rnd=bf):
    f32 = np.float32
    R = {}
    sc = rnd(c / (1 + np.exp(-c)))
    mod = rnd(sc.astype(np.float64) @ wmod.astype(np.float64)).reshape(6, D)
    sa, ca, ga, sb, cb, gb = mod
    R['mod'] = mod
    h = rnd(ln(x.astype(np.float64)) * rnd(1 + ca) + sa)
    R['h'] = h
    hh = h.reshape(32, 64, 32, 16).astype(np.float64)
    V = rnd(np.einsum('abed,degc->abdgc', hh, rnd(mat_F2()).astype(np.float64)))
    F1 = rnd(mat_F1()).astype(np.float64)
    Fg = np.stack([F1[0]] + [F1[1]] * 15)
    X = rnd(np.einsum('abdgx,gdxmc->abgmc', V.astype(np.float64), Fg))
    R['X'] = X
    s1 = np.arange(32); s2 = np.arange(64); k1 = np.arange(32); k2 = np.arange(64)
    X1 = np.zeros((32, 64, 16, 16, 2))
    for b in range(64):
        E = np.exp(-2j * np.pi * np.outer(k1, 64 * s1 + b) / 2048)
        X1[:, b] = np.einsum('kcax,agmx->kgmc', rnd(cmat(E)).astype(np.float64), X[:, b].astype(np.float64))
    P = X1[:, :, 0, 0, 0] + 1j * X1[:, :, 0, 0, 1]
    side = np.zeros((32, 64), complex)
    for k in range(32):
        ks = (32 - k) % 32
        side[k] = np.conj(P[ks]) * (np.exp(-2j * np.pi * s2 / 64) if k else 1.0)
    side = rnd(np.stack([side.real, side.imag], -1))
    X1 = rnd(X1)
    R['X1'] = X1; R['side'] = side
    E64 = rnd(cmat(np.exp(-2j * np.pi * np.outer(k2, s2) / 64))).astype(np.float64)
    Xf = np.einsum('jcbx,kbgmx->kjgmc', E64, X1.astype(np.float64))
    Sf = np.einsum('jcbx,kbx->kjc', E64, side.astype(np.float64))
    Xf = Xf[..., 0] + 1j * Xf[..., 1]; Sf = Sf[..., 0] + 1j * Sf[..., 1]
    W = wr.astype(np.float64) + 1j * wi.astype(np.float64)
    ksi = (k1[:, None] + 32 * k2[None, :])
    cols = np.array([[kcol(g, m) for m in range(16)] for g in range(16)])
    Q = Xf * W[ksi][:, :, cols]
    neg = (-ksi) % 2048
    Wa = (W[ksi, 0] + np.conj(W[neg, 0])) / 2; Wb = (W[ksi, 256] + np.conj(W[neg, 256])) / 2
    Q[:, :, 0, 0] = Xf[:, :, 0, 0] * (Wa + Wb) / 2 + Sf * (Wa - Wb) / 2
    Q = Q * WSCALE
    Qc = rnd(np.stack([Q.real, -Q.imag], -1))
    Zc = np.einsum('bcjx,kjgmx->bkgmc', E64, Qc.astype(np.float64))
    Z = Zc.copy(); Z[..., 1] *= -1
    Z = rnd(Z)
    R['Z'] = Z
    Y = np.zeros((32, 64, 16, 16, 2))
    for b in range(64):
        E = np.exp(2j * np.pi * np.outer(64 * s1 + b, k1) / 2048)
        Y[:, b] = np.einsum('ackx,kgmx->agmc', rnd(cmat(E)).astype(np.float64), Z[b].astype(np.float64))
    Y = rnd(Y)
    I1 = rnd(mat_I1()).astype(np.float64)
    Ig = np.stack([I1[0]] + [I1[1]] * 15)
    Vp = rnd(np.einsum('abgmx,gmxdc->abdgc', Y.astype(np.float64), Ig))
    I2 = mat_I2()
    gad = ga.reshape(32, 16).T
    I2g = rnd(I2 * gad[:, None, None, :]).astype(np.float64)
    gy = np.einsum('abdgc,dgce->abed', Vp.astype(np.float64), I2g).reshape(S, D)
    y = np.einsum('abdgc,dgce->abed', Vp.astype(np.float64), rnd(I2).astype(np.float64)).reshape(S, D)
    R['y'] = y
    x1 = x + gy
    R['x1'] = x1
    h2 = rnd(ln(x1) * rnd(1 + cb) + sb)
    R['h2'] = h2
    a = h2.astype(np.float64) @ w1.astype(np.float64) + b1
    e = np.exp(np.minimum(a, 40)); act = rnd(a - 2 * a / ((e + 1) ** 2 + 1))
    R['act'] = act
    o = act.astype(np.float64) @ w2.astype(np.float64)
    R['out'] = rnd(x1 + gb * o)
    return R

if __name__ == "__main__":
    rng = np.random.default_rng(0)
    x = bf(rng.standard_normal((S, D)) * 0.05); wr = bf(rng.standard_normal((S, 257)) * 0.032); wi = bf(rng.standard_normal((S, 257)) * 0.032)
    w1 = bf(rng.standard_normal((D, F)) * 0.8 / np.sqrt(D)); b1 = bf(rng.standard_normal(F) * 0.4); w2 = bf(rng.standard_normal((F, D)) * 0.2 / np.sqrt(F))
    c = bf(rng.standard_normal((1, D)) * 1.6); wmod = bf(rng.standard_normal((D, 6 * D)) * 1.6 / np.sqrt(D))
    ident = lambda a: np.asarray(a, dtype=np.float64)
    E = pipeline(x, wr, wi, w1, b1, w2, c, wmod, rnd=ident)
    yref = np.fft.irfft2(np.fft.rfft2(E['h']) * (wr + 1j * wi), s=(S, D))
    print("exact-mode y err", np.abs(E['y'] - yref).max(), "y rms", yref.std())
    B = pipeline(x, wr, wi, w1, b1, w2, c, wmod)
    for k in ('h', 'y', 'x1', 'h2', 'act', 'out'):
        d = B[k] - E[k]
        print(k, "rms", E[k].std(), "err rms", d.std(), "err max", np.abs(d).max(), "absmax", np.abs(E[k]).max())
```

```python
import sys
from common import *

def k0(A):
    n = "k0_kernel"
    prologue(A, n, 524)
    A("""s_load_dwordx4 s[4:7], s[0:1], 8
    s_load_dwordx4 s[8:11], s[0:1], 32
    s_load_dwordx4 s[12:15], s[0:1], 48
    s_load_dwordx2 s[16:17], s[0:1], 64
    s_load_dwordx2 s[18:19], s[0:1], 88
    s_waitcnt lgkmcnt(0)""")
    srd(A, 20, 18, 0x10000000)
    A("s_cmp_lt_u32 s2, 96\ns_cbranch_scc1 L_k0_mod\ns_cmp_lt_u32 s2, 268\ns_cbranch_scc1 L_k0_w\ns_branch L_k0_W")
    A("L_k0_mod:"); A.reset_state()
    srd(A, 24, 14, 1024); srd(A, 28, 16, 512 * 6144)
    A("""v_lshrrev_b32 v1, 2, v0
    v_and_b32 v2, 3, v0
    v_lshlrev_b32 v3, 1, v1
    v_mul_u32_u24 v4, 6144, v1
    v_lshl_add_u32 v4, v2, 4, v4
    s_lshl_b32 s32, s2, 6""")
    for i in range(8): A(f"buffer_load_ushort v{8+i}, v3, s[24:27], 0 offen offset:{128*i}")
    for i in range(8):
        A(f"buffer_load_dwordx4 {v(16+4*i,4)}, v4, s[28:31], s32 offen")
        if i < 7: A(f"s_add_u32 s32, s32, {64*6144}")
    for i in range(8):
        A(f"v_lshlrev_b32 v{8+i}, 16, v{8+i}\nv_mul_f32 v50, {fhex(-1.4426950408889634)}, v{8+i}\nv_exp_f32 v50, v50")
        A(f"v_add_f32 v50, 1.0, v50\nv_rcp_f32 v50, v50\nv_mul_f32 v50, v{8+i}, v50\nv_cvt_pk_bf16_f32 v50, v50, v50\nv_lshlrev_b32 v{8+i}, 16, v50")
    for i in range(8):
        for j in range(4):
            unpack(A, 50, 51, 16 + 4 * i + j)
            if i == 0: A(f"v_mul_f32 v{52+2*j}, v50, v8\nv_mul_f32 v{53+2*j}, v51, v8")
            else: A(f"v_fmac_f32 v{52+2*j}, v50, v{8+i}\nv_fmac_f32 v{53+2*j}, v51, v{8+i}")
    for sh in (4, 8):
        for j in range(8): A(f"v_add_f32_dpp v{52+j}, v{52+j}, v{52+j} row_ror:{sh} row_mask:0xf bank_mask:0xf")
    A("""v_lshrrev_b32 v1, 4, v0
    v_lshlrev_b32 v1, 7, v1
    v_lshl_add_u32 v1, v2, 5, v1
    ds_write_b128 v1, v[52:55]
    ds_write_b128 v1, v[56:59] offset:16
    s_waitcnt lgkmcnt(0)
    s_barrier
    v_cmp_gt_u32 vcc, 32, v0
    s_and_saveexec_b64 s[34:35], vcc
    s_cbranch_execz L_end_k0_kernel
    v_lshlrev_b32 v1, 2, v0""")
    for i in range(16): A(f"ds_read_b32 v{8+i}, v1 offset:{128*i}")
    for st in (8, 4, 2, 1):
        for i in range(st): A(f"v_add_f32 v{8+i}, v{8+i}, v{8+st+i}")
    A("""v_cvt_pk_bf16_f32 v8, v8, v8
    v_lshlrev_b32 v8, 16, v8
    s_lshr_b32 s33, s2, 4
    s_cmp_eq_u32 s33, 1
    s_cselect_b32 s36, 1.0, 0
    s_cmp_eq_u32 s33, 4
    s_cselect_b32 s36, 1.0, s36
    v_add_f32 v8, s36, v8
    v_cvt_pk_bf16_f32 v8, v8, v8
    v_lshlrev_b32 v8, 16, v8
    s_and_b32 s37, s2, 15
    s_lshl_b32 s37, s37, 5
    v_add_u32 v2, s37, v0
    v_and_b32 v3, 15, v2
    v_lshlrev_b32 v3, 5, v3
    v_lshrrev_b32 v4, 4, v2
    v_add_u32 v3, v3, v4
    s_cmp_eq_u32 s33, 5
    s_cselect_b64 vcc, -1, 0
    v_cndmask_b32 v3, v3, v2, vcc
    v_lshlrev_b32 v3, 2, v3
    s_lshl_b32 s33, s33, 11
    buffer_store_dword v8, v3, s[20:23], s33 offen
    s_endpgm""")
    A("L_k0_w:"); A.reset_state()
    A("s_cmp_lt_u32 s2, 182\ns_cbranch_scc0 L_k0_w2")
    srd(A, 24, 8, 512 * 2752)
    A(f"""s_sub_u32 s32, s2, 96
    s_lshl_b32 s32, s32, 8
    v_add_u32 v1, s32, v0
    s_mov_b32 s33, {(1<<32)//344+1}
    v_mul_hi_u32 v2, v1, s33
    v_mul_u32_u24 v3, 344, v2
    v_sub_u32 v3, v1, v3
    v_lshrrev_b32 v4, 2, v2
    v_and_b32 v5, 3, v2
    v_lshrrev_b32 v6, 1, v5
    v_and_b32 v5, 1, v5
    v_lshlrev_b32 v6, 8, v6
    v_lshl_add_u32 v6, v5, 6, v6
    v_add_u32 v6, v6, v4
    v_mul_u32_u24 v6, 2752, v6
    v_lshl_add_u32 v6, v3, 3, v6
    v_lshrrev_b32 v7, 3, v3
    v_lshlrev_b32 v7, 15, v7
    v_lshrrev_b32 v4, 1, v2
    v_lshl_add_u32 v7, v4, 10, v7
    v_lshl_add_u32 v7, v5, 9, v7
    v_and_b32 v4, 7, v3
    v_lshl_add_u32 v7, v4, 6, v7
    s_mov_b32 s34, {WS_W1P}""")
    for i in range(8):
        A(f"s_mov_b32 s35, {(16*(8*(i>>2)+(i&3)))*2752}\nbuffer_load_dwordx2 {v(8+2*i,2)}, v6, s[24:27], s35 offen")
    A("s_branch L_k0_tr")
    A("L_k0_w2:"); A.reset_state()
    srd(A, 24, 12, 1376 * 1024)
    A(f"""s_sub_u32 s32, s2, 182
    s_lshl_b32 s32, s32, 8
    v_add_u32 v1, s32, v0
    v_lshrrev_b32 v2, 7, v1
    v_and_b32 v3, 127, v1
    v_lshrrev_b32 v4, 1, v2
    v_and_b32 v5, 1, v2
    v_lshlrev_b32 v6, 4, v4
    v_lshl_add_u32 v6, v5, 2, v6
    v_lshlrev_b32 v6, 10, v6
    v_lshl_add_u32 v6, v3, 3, v6
    v_lshlrev_b32 v7, 14, v4
    v_lshrrev_b32 v4, 3, v3
    v_lshl_add_u32 v7, v4, 10, v7
    v_lshl_add_u32 v7, v5, 9, v7
    v_and_b32 v4, 7, v3
    v_lshl_add_u32 v7, v4, 6, v7
    s_mov_b32 s34, {WS_W2P}""")
    for i in range(8):
        A(f"s_mov_b32 s35, {(8*(i>>2)+(i&3))*1024}\nbuffer_load_dwordx2 {v(8+2*i,2)}, v6, s[24:27], s35 offen")
    A("L_k0_tr:\ns_waitcnt vmcnt(0)\ns_mov_b32 s36, 0x05040100\ns_mov_b32 s37, 0x07060302"); A.reset_state()
    for i in range(4):
        for p in range(4):
            A(f"v_perm_b32 v{24+4*i+p}, v{8+2*(2*p+1)+(i>>1)}, v{8+2*(2*p)+(i>>1)}, s{36+(i&1)}")
        A(f"buffer_store_dwordx4 {v(24+4*i,4)}, v7, s[20:23], s34 offen offset:{16*i}")
    A("s_endpgm")
    A("L_k0_W:"); A.reset_state()
    srd(A, 24, 4, 2048 * 514); srd(A, 28, 6, 2048 * 514)
    A(f"""s_sub_u32 s32, s2, 268
    s_lshr_b32 s33, s32, 4
    s_and_b32 s34, s32, 15
    s_lshl_b32 s34, s34, 1
    v_lshrrev_b32 v1, 4, v0
    v_and_b32 v2, 15, v0
    v_lshlrev_b32 v3, 5, v2
    v_add_u32 v4, v3, v1
    v_sub_u32 v5, 512, v4
    v_subrev_u32 v6, 240, v3
    v_cmp_eq_u32 vcc, 0, v1
    v_cndmask_b32 v5, v5, v6, vcc
    v_cmp_gt_u32 vcc, 8, v2
    v_cndmask_b32 v4, v5, v4, vcc
    v_lshlrev_b32 v4, 1, v4
    s_lshl_b32 s35, s33, 7
    s_add_u32 s35, s35, s34
    s_mul_i32 s36, s35, 514""")
    for i in range(2):
        for r in range(4):
            A(f"s_add_u32 s37, s36, {(i+32*r)*514}")
            A(f"buffer_load_ushort v{8+4*i+r}, v4, s[24:27], s37 offen\nbuffer_load_ushort v{16+4*i+r}, v4, s[28:31], s37 offen")
    A(f"""s_lshr_b32 s38, s34, 2
    s_lshl_b32 s38, s38, 18
    s_lshl_b32 s39, s33, 8
    s_add_u32 s38, s38, s39
    s_and_b32 s39, s34, 3
    s_lshl_b32 s39, s39, 4
    s_add_u32 s38, s38, s39
    s_add_u32 s38, s38, {WS_WP}
    v_lshrrev_b32 v5, 2, v0
    v_lshlrev_b32 v5, 12, v5
    v_and_b32 v6, 3, v0
    v_lshl_add_u32 v5, v6, 6, v5
    v_mov_b32 v6, {OOB}
    v_cmp_eq_u32 vcc, 0, v0
    v_cndmask_b32 v5, v5, v6, vcc""")
    for i in range(8): A(f"v_lshl_or_b32 v{8+i}, v{16+i}, 16, v{8+i}")
    for i in range(2): A(f"buffer_store_dwordx4 {v(8+4*i,4)}, v5, s[20:23], s38 offen offset:{16*i}")
    A(f"""v_cmp_gt_u32 vcc, 8, v0
    s_and_saveexec_b64 s[40:41], vcc
    s_cbranch_execz L_end_k0_kernel
    v_lshrrev_b32 v1, 2, v0
    v_and_b32 v2, 3, v0
    v_lshl_add_u32 v3, v2, 5, v1
    v_add_u32 v3, s35, v3
    v_sub_u32 v4, 2048, v3
    v_and_b32 v4, 2047, v4
    v_mul_u32_u24 v3, 514, v3
    v_mul_u32_u24 v4, 514, v4
    buffer_load_ushort v24, v3, s[24:27], 0 offen
    buffer_load_ushort v25, v3, s[24:27], 0 offen offset:512
    buffer_load_ushort v26, v4, s[24:27], 0 offen
    buffer_load_ushort v27, v4, s[24:27], 0 offen offset:512
    buffer_load_ushort v28, v3, s[28:31], 0 offen
    buffer_load_ushort v29, v3, s[28:31], 0 offen offset:512
    buffer_load_ushort v30, v4, s[28:31], 0 offen
    buffer_load_ushort v31, v4, s[28:31], 0 offen offset:512""")
    for i in range(8): A(f"v_lshlrev_b32 v{24+i}, 16, v{24+i}")
    A(f"""v_add_f32 v24, v24, v26
    v_add_f32 v25, v25, v27
    v_sub_f32 v28, v28, v30
    v_sub_f32 v29, v29, v31
    v_add_f32 v26, v24, v25
    v_add_f32 v27, v28, v29
    v_sub_f32 v30, v24, v25
    v_sub_f32 v31, v28, v29
    v_mul_f32 v26, 0.25, v26
    v_mul_f32 v27, 0.25, v27
    v_mul_f32 v30, 0.25, v30
    v_mul_f32 v31, 0.25, v31
    v_cvt_pk_bf16_f32 v26, v26, v27
    v_cvt_pk_bf16_f32 v30, v30, v31
    v_lshlrev_b32 v2, 2, v2
    v_lshl_add_u32 v2, v1, 4, v2
    buffer_store_dword v26, v2, s[20:23], s38 offen
    s_lshr_b32 s38, s34, 2
    s_lshl_b32 s38, s38, 10
    s_lshl_b32 s42, s33, 6
    s_add_u32 s38, s38, s42
    s_add_u32 s38, s38, s39
    s_add_u32 s38, s38, {WS_VP}
    buffer_store_dword v30, v2, s[20:23], s38 offen""".replace("0.25", fhex(0.25)))
    epilogue(A, n)
    A.raw(kernel_desc(n, 64, 64))

XS = 1040
def load_x_lds(A, sx, s_s2, s_w, vl16, st):
    A(f"s_lshl_b32 {s(st)}, {s(s_w)}, 19\ns_lshl_b32 {s(st+1)}, {s(s_s2)}, 10\ns_add_u32 {s(st)}, {s(st)}, {s(st+1)}\ns_mul_i32 {s(st+1)}, {s(s_w)}, {8*XS}")
    for i in range(8):
        A(f"s_mov_b32 m0, {s(st+1)}\nbuffer_load_dwordx4 {v(vl16)}, {s(sx,4)}, {s(st)} offen lds")
        if i < 7: A(f"s_add_u32 {s(st)}, {s(st)}, 65536\ns_add_u32 {s(st+1)}, {s(st+1)}, {XS}")

def read_x_unpack(A, X, P, vaddr):
    for j in range(4):
        for r in range(4):
            A(f"ds_read_b64 {v(P+2*(4*j+r),2)}, {v(vaddr)} offset:{(8*j+r)*32}")
    for j in range(4):
        for r in range(4):
            for hf in range(2):
                unpack(A, X + 16 * (2 * hf) + 4 * j + r, X + 16 * (2 * hf + 1) + 4 * j + r, P + 2 * (4 * j + r) + hf)

def ids(A):
    A("""v_lshrrev_b32 v1, 6, v0
    v_and_b32 v0, 63, v0
    v_readfirstlane_b32 s3, v1
    v_lshlrev_b32 v2, 4, v0
    v_and_b32 v3, 31, v0
    v_lshrrev_b32 v4, 5, v0
    v_and_b32 v5, 15, v0
    v_lshrrev_b32 v6, 4, v0""")

def modulate(A, X, vR, vMR, vpa, poff, PT, H, after_tile):
    for aa in range(4):
        for j in range(4):
            T = PT + 8 * (j & 1)
            A(f"ds_read_b128 {v(T,4)}, {v(vpa)} offset:{poff+(aa*4+j)*32}\nds_read_b128 {v(T+4,4)}, {v(vpa)} offset:{poff+512+(aa*4+j)*32}")
            x = X + 16 * aa + 4 * j
            T2 = PT + 16
            for hp in range(2):
                A(f"v_pk_fma_f32 {v(T2+2*hp,2)}, {v(x+2*hp,2)}, {v(vR,2)}, {v(vR,2)} op_sel:[0,0,1] op_sel_hi:[1,0,1]")
            for hp in range(2):
                A(f"v_pk_fma_f32 {v(T2+2*hp,2)}, {v(T2+2*hp,2)}, {v(T+4+2*hp,2)}, {v(T+2*hp,2)}")
            for hp in range(2):
                A(f"v_cvt_pk_bf16_f32 {v(H(aa)+2*j+hp)}, {v(T2+2*hp)}, {v(T2+2*hp+1)}")
        after_tile(aa)

def k1(A):
    n = "k1_kernel"
    L_X, L_P, L_ST, L_V = 0, 33280, 37376, 40960
    prologue(A, n, 256)
    A("s_load_dwordx2 s[4:5], s[0:1], 0\ns_load_dwordx2 s[6:7], s[0:1], 88")
    ids(A)
    A("s_and_b32 s20, s2, 3\ns_lshr_b32 s21, s2, 2")
    tables_ptr(A, 16, "k1")
    A("s_waitcnt lgkmcnt(0)")
    srd(A, 8, 4, 0x200000); srd(A, 12, 6, 0x10000000)
    load_x_lds(A, 8, 21, 3, 2, 22)
    A(f"""v_lshlrev_b32 v7, 4, v3
    v_lshl_add_u32 v7, v4, 11, v7
    s_lshl_b32 s22, s3, 9
    s_lshl_b32 s23, s3, 10
    s_add_u32 s23, s23, {L_P}
    s_mov_b32 m0, s23
    buffer_load_dwordx4 v7, s[12:15], s22 offen lds
    s_or_b32 s24, s20, s3
    s_cmp_eq_u32 s24, 0
    s_cselect_b32 s25, 0, 2048
    v_add_u32 v8, s25, v2""")
    F1 = 200
    A(f"global_load_dwordx4 {v(F1,4)}, v8, s[16:17] offset:{TAB_F1}\nglobal_load_dwordx4 {v(F1+4,4)}, v8, s[16:17] offset:{TAB_F1+1024}")
    F2 = 128; G = 160; T = 176
    A(f"""v_lshrrev_b32 v9, 3, v3
    s_lshl_b32 s26, s3, 2
    v_add_u32 v9, s26, v9
    v_bfe_u32 v10, v3, 1, 2
    s_lshl_b32 s26, s20, 2
    v_add_u32 v10, s26, v10
    v_and_b32 v11, 1, v3
    v_mul_u32_u24 v12, v9, v10
    v_lshl_add_u32 v12, v11, 7, v12
    v_lshlrev_b32 v13, 4, v10
    v_lshlrev_b32 v14, 1, v10
    v_or_b32 v14, v14, v11
    v_cmp_eq_u32 vcc, 1, v14
    v_cndmask_b32 v12, v12, 0, vcc
    v_mov_b32 v14, 256
    v_cndmask_b32 v13, v13, v14, vcc
    v_lshlrev_b32 v14, 2, v4
    v_mad_u32_u24 v12, v13, v14, v12
    v_cvt_f32_u32 v12, v12
    v_cvt_f32_u32 v13, v13
    v_mul_f32 v12, {fhex(1/512)}, v12
    v_mul_f32 v13, {fhex(1/512)}, v13""")
    for t in range(2):
        for jj in range(2):
            for r in range(4):
                k = 16 * t + 8 * jj + r
                A(f"v_fmamk_f32 {v(T+r)}, v13, {fhex(k)}, v12" if k else f"v_mov_b32 {v(T+r)}, v12")
            for r in range(4): A(f"v_cos_f32 {v(T+r)}, {v(T+r)}")
            for rp in range(2): A(f"v_cvt_pk_bf16_f32 {v(G+4*t+2*jj+rp)}, {v(T+2*rp)}, {v(T+2*rp+1)}")
    for aa in range(4):
        A(f"s_mov_b32 s26, {hex(0xFF << (8*aa))}\ns_mov_b32 s27, s26")
        for i in range(8): A(f"v_cndmask_b32 {v(F2+8*aa+i)}, 0, {v(G+i)}, s[26:27]")
    FA = 208
    A(f"""v_lshlrev_b32 v9, 8, v6
    v_add_u32 v9, s21, v9
    v_cvt_f32_u32 v9, v9
    v_mul_f32 v9, {fhex(1/2048)}, v9""")
    for nh in range(2):
        A(f"v_add_u32 v10, {16*nh}, v5\nv_cvt_f32_u32 v10, v10\nv_mul_f32 v11, v10, v9\nv_mul_f32 v12, {fhex(1/32)}, v10")
        ks = [16 * t + r for t in range(2) for r in range(4)]
        gen_cs_frags(A, 11, 12, ks, [FA + 8 * nh + i for i in range(8)], [FA + 16 + 8 * nh + i for i in range(8)], T, -1)
    X, P = 16, 80
    A(f"""v_mul_u32_u24 v9, {XS}, v3
    v_lshl_add_u32 v9, v4, 7, v9
    s_lshl_b32 s26, s3, 3
    v_add_u32 v9, s26, v9
    v_mul_u32_u24 v10, 80, v3
    v_lshl_add_u32 v11, v4, 3, v10
    s_lshl_b32 s26, s3, 4
    v_add_u32 v11, s26, v11
    v_lshlrev_b32 v12, 4, v4
    v_add_u32 v12, s23, v12
    s_waitcnt vmcnt(0)
    s_barrier""")
    read_x_unpack(A, X, P, 9)
    row_stats(A, X, 112, L_ST, 11, 10, 14, 15)
    ACC = 160; H = 80
    def after(aa):
        for t in range(2):
            mfma32(A, v(ACC, 16), v(F2 + 8 * aa + 4 * t, 4), v(H + 8 * aa + 4 * t, 4), "0" if aa == 0 and t == 0 else None)
    modulate(A, X, 14, 15, 12, 0, 176, lambda aa: H + 8 * aa, after)
    A(f"""v_lshlrev_b32 v9, 12, v4
    v_lshl_add_u32 v9, v3, 4, v9
    s_lshl_b32 s26, s3, 9
    v_add_u32 v9, s26, v9
    v_lshlrev_b32 v10, 9, v6
    v_lshl_add_u32 v10, v5, 4, v10
    s_lshl_b32 s26, s3, 11
    v_add_u32 v10, s26, v10""")
    for u in range(2):
        for j in range(4): A(f"v_cvt_pk_bf16_f32 {v(16+4*u+j)}, {v(ACC+4*j+2*u)}, {v(ACC+4*j+2*u+1)}")
        A(f"ds_write_b128 v9, {v(16+4*u,4)} offset:{L_V+2048*u}")
    A("s_waitcnt lgkmcnt(0)\ns_barrier")
    for hf in range(2): A(f"ds_read_b128 {v(24+4*hf,4)}, v10 offset:{L_V+256*hf}")
    for hf in range(2):
        for c in range(2): mfma16(A, v(32 + 8 * hf + 4 * c, 4), v(24 + 4 * hf, 4), v(F1 + 4 * c, 4), "0")
    for hf in range(2):
        for r in range(4): A(f"v_cvt_pk_bf16_f32 {v(48+4*hf+r)}, {v(32+8*hf+r)}, {v(36+8*hf+r)}")
    def fa(src, acc, dst):
        for nh in range(2):
            for c in range(2):
                for t in range(2): mfma16(A, v(acc + 8 * nh + 4 * c, 4), v(FA + 16 * c + 8 * nh + 4 * t, 4), v(src + 4 * t, 4), "0" if t == 0 else None)
        for nh in range(2):
            for r in range(4): A(f"v_cvt_pk_bf16_f32 {v(dst+4*nh+r)}, {v(acc+8*nh+r)}, {v(acc+8*nh+4+r)}")
    A(f"""v_lshlrev_b32 v9, 12, v6
    v_lshl_add_u32 v9, v5, 4, v9
    s_lshl_b32 s26, s21, 15
    s_lshl_b32 s27, s20, 10
    s_add_u32 s26, s26, s27
    s_lshl_b32 s27, s3, 8
    s_add_u32 s26, s26, s27
    s_add_u32 s26, s26, {WS_X1}
    s_add_u32 s27, s26, 16384""")
    fa(48, 56, 72)
    A("buffer_store_dwordx4 v[72:75], v9, s[12:15], s26 offen\nbuffer_store_dwordx4 v[76:79], v9, s[12:15], s27 offen")
    A("s_cmp_lg_u32 s24, 0\ns_cbranch_scc1 L_end_k1_kernel")
    A.begin_cond()
    for i in range(8): A(f"v_xor_b32 {v(48+i)}, 0x80000000, {v(48+i)}")
    A(f"""v_lshlrev_b32 v9, 4, v6
    v_mov_b32 v10, {OOB}
    v_cmp_eq_u32 vcc, 0, v5
    v_cndmask_b32 v9, v10, v9, vcc
    s_lshl_b32 s26, s21, 7
    s_add_u32 s26, s26, {WS_SIDE}""")
    fa(48, 80, 96)
    A("buffer_store_dwordx4 v[96:99], v9, s[12:15], s26 offen\nbuffer_store_dwordx4 v[100:103], v9, s[12:15], s26 offen offset:64")
    A.end_cond()
    epilogue(A, n)
    A.raw(kernel_desc(n, 256, 256))
    return 49152

def k2(A):
    n = "k2_kernel"
    prologue(A, n, 256)
    A("s_load_dwordx2 s[6:7], s[0:1], 88")
    ids(A)
    A("""s_and_b32 s20, s2, 7
    s_lshr_b32 s21, s2, 3
    s_and_b32 s22, s3, 1
    s_lshr_b32 s23, s3, 1
    s_waitcnt lgkmcnt(0)""")
    srd(A, 12, 6, 0x10000000)
    D, DS, WR, VR, M, ACC, ACS = 16, 32, 48, 56, 64, 128, 144
    A(f"""v_lshlrev_b32 v7, 17, v6
    v_lshl_add_u32 v7, v5, 2, v7
    s_lshl_b32 s24, s20, 12
    s_lshl_b32 s25, s21, 7
    s_add_u32 s24, s24, s25
    s_lshl_b32 s25, s23, 6
    s_add_u32 s24, s24, s25
    s_add_u32 s28, s24, {WS_Z}
    s_add_u32 s24, s24, {WS_X1}
    s_lshl_b32 s25, s22, 20
    s_add_u32 s26, s24, s25
    s_xor_b32 s25, s25, 0x100000
    s_add_u32 s27, s24, s25""")
    for tt in range(4):
        for e in range(4):
            A(f"s_add_u32 s29, {s(26 + (tt >> 1))}, {((tt&1)*16+e)*32768}\nbuffer_load_dword {v(D+4*tt+e)}, v7, s[12:15], s29 offen")
    A(f"""s_lshl_b32 s24, s20, 18
    s_lshl_b32 s25, s21, 13
    s_add_u32 s24, s24, s25
    s_lshl_b32 s25, s23, 12
    s_add_u32 s24, s24, s25
    s_lshl_b32 s25, s22, 11
    s_add_u32 s24, s24, s25
    s_add_u32 s24, s24, {WS_WP}
    buffer_load_dwordx4 {v(WR,4)}, v2, s[12:15], s24 offen
    buffer_load_dwordx4 {v(WR+4,4)}, v2, s[12:15], s24 offen offset:1024
    s_or_b32 s30, s21, s23
    s_cmp_lg_u32 s30, 0
    s_cbranch_scc1 L_k2_nos1""")
    A.begin_cond()
    A(f"""v_lshlrev_b32 v8, 9, v6
    v_lshl_add_u32 v8, v5, 2, v8
    v_lshlrev_b32 v9, 6, v6
    v_lshl_add_u32 v9, v5, 4, v9
    v_mov_b32 v10, {OOB}
    v_cmp_gt_u32 vcc, 4, v5
    v_cndmask_b32 v8, v10, v8, vcc
    v_cndmask_b32 v9, v10, v9, vcc
    s_lshl_b32 s24, s20, 4
    s_add_u32 s24, s24, {WS_SIDE}
    s_lshl_b32 s25, s22, 12
    s_add_u32 s26, s24, s25
    s_xor_b32 s25, s25, 0x1000
    s_add_u32 s27, s24, s25""")
    for tt in range(4):
        for e in range(4):
            A(f"buffer_load_dword {v(DS+4*tt+e)}, v8, s[12:15], {s(26 + (tt >> 1))} offen offset:{((tt&1)*16+e)*128}")
    A(f"""s_lshl_b32 s24, s20, 10
    s_lshl_b32 s25, s22, 9
    s_add_u32 s24, s24, s25
    s_add_u32 s24, s24, {WS_VP}
    buffer_load_dwordx4 {v(VR,4)}, v9, s[12:15], s24 offen
    buffer_load_dwordx4 {v(VR+4,4)}, v9, s[12:15], s24 offen offset:256""")
    A.end_cond()
    A("L_k2_nos1:")
    A(f"""s_lshl_b32 s24, s22, 5
    v_lshl_add_u32 v9, v6, 2, s24
    v_cvt_f32_u32 v9, v9""")
    for b in range(2):
        A(f"v_add_u32 v10, s24, v5\nv_add_u32 v10, {16*b}, v10\nv_cvt_f32_u32 v10, v10\nv_mul_f32 v12, {fhex(1/64)}, v10\nv_mul_f32 v11, v12, v9")
        ks = [16 * t + e for t in range(4) for e in range(4)]
        gen_cs_frags(A, 11, 12, ks, [M + 16 * b + i for i in range(16)], [M + 32 + 16 * b + i for i in range(16)], 160, -1)
    def fwd(src, acc):
        for b in range(2):
            for c in range(2):
                for t in range(4): mfma16(A, v(acc + 8 * b + 4 * c, 4), v(M + 32 * c + 16 * b + 4 * t, 4), v(src + 4 * t, 4), "0" if t == 0 else None)
    WF, Q = 160, 176
    fwd(D, ACC)
    for i in range(8): unpack(A, WF + 2 * i, WF + 2 * i + 1, WR + i)
    for b in range(2):
        for r in range(4):
            i = 4 * b + r; xr, xi = v(ACC + 8 * b + r), v(ACC + 8 * b + 4 + r)
            A(f"v_mul_f32 {v(Q+2*i)}, {xr}, {v(WF+2*i)}\nv_mul_f32 {v(Q+2*i+1)}, {xr}, {v(WF+2*i+1)}")
            A(f"v_fma_f32 {v(Q+2*i)}, -{xi}, {v(WF+2*i+1)}, {v(Q+2*i)}\nv_fmac_f32 {v(Q+2*i+1)}, {xi}, {v(WF+2*i)}")
    A("s_cmp_lg_u32 s30, 0\ns_cbranch_scc1 L_k2_nos2")
    A.begin_cond()
    fwd(DS, ACS)
    for i in range(8): unpack(A, WF + 2 * i, WF + 2 * i + 1, VR + i)
    for b in range(2):
        for r in range(4):
            i = 4 * b + r; xr, xi = v(ACS + 8 * b + r), v(ACS + 8 * b + 4 + r)
            A(f"v_fmac_f32 {v(Q+2*i)}, {xr}, {v(WF+2*i)}\nv_fmac_f32 {v(Q+2*i+1)}, {xr}, {v(WF+2*i+1)}")
            A(f"v_fma_f32 {v(Q+2*i)}, -{xi}, {v(WF+2*i+1)}, {v(Q+2*i)}\nv_fmac_f32 {v(Q+2*i+1)}, {xi}, {v(WF+2*i)}")
    A.end_cond()
    A("L_k2_nos2:")
    for i in range(8): A(f"v_cvt_pk_bf16_f32 {v(D+i)}, {v(Q+2*i)}, -{v(Q+2*i+1)}")
    A(f"""s_lshl_b32 s24, s3, 11
    v_add_u32 v8, s24, v2
    v_xor_b32 v9, 2048, v8
    ds_write_b128 v8, {v(D,4)}
    ds_write_b128 v8, {v(D+4,4)} offset:1024
    s_waitcnt lgkmcnt(0)
    s_barrier
    ds_read_b128 {v(D+8,4)}, v9
    ds_read_b128 {v(D+12,4)}, v9 offset:1024""")
    for t in range(4):
        for b in range(2):
            for c in range(2): mfma16(A, v(ACC + 8 * b + 4 * c, 4), v(D + 4 * t, 4), v(M + 32 * c + 16 * b + 4 * t, 4), "0" if t == 0 else None)
    A(f"""v_lshlrev_b32 v8, 15, v5
    v_lshl_add_u32 v8, v6, 4, v8
    s_lshl_b32 s24, s22, 20
    s_add_u32 s28, s28, s24
    s_add_u32 s29, s28, {16*32768}""")
    for b in range(2):
        for r in range(4): A(f"v_cvt_pk_bf16_f32 {v(Q+4*b+r)}, {v(ACC+8*b+r)}, -{v(ACC+8*b+4+r)}")
        A(f"buffer_store_dwordx4 {v(Q+4*b,4)}, v8, s[12:15], {s(28+b)} offen")
    epilogue(A, n)
    A.raw(kernel_desc(n, 192, 192))
    return 8192

def mish_tile(A, ACC, T, OUT):
    for i0 in range(0, 16, 4):
        for u in range(4): A(f"v_mul_f32 {v(T+u)}, {fhex(1.4426950408889634)}, {v(ACC+i0+u)}")
        for u in range(4): A(f"v_exp_f32 {v(T+u)}, {v(T+u)}")
        for u in range(4): A(f"v_add_f32 {v(T+u)}, 1.0, {v(T+u)}")
        for u in range(4): A(f"v_fma_f32 {v(T+u)}, {v(T+u)}, {v(T+u)}, 1.0")
        for u in range(4): A(f"v_rcp_f32 {v(T+u)}, {v(T+u)}")
        for u in range(4): A(f"v_mul_f32 {v(T+u)}, {v(ACC+i0+u)}, {v(T+u)}")
        for u in range(4): A(f"v_fma_f32 {v(T+u)}, {v(T+u)}, -2.0, {v(ACC+i0+u)}")
        for u in range(2): A(f"v_cvt_pk_bf16_f32 {v(OUT+i0//2+u)}, {v(T+2*u)}, {v(T+2*u+1)}")

def k3(A):
    n = "k3_kernel"
    L_H, L_X, L_ST, L_R, L_P, L_W = 0, 0, 33280, 35840, 52224, 56320
    prologue(A, n, 256)
    A("s_load_dwordx2 s[4:5], s[0:1], 0\ns_load_dwordx2 s[6:7], s[0:1], 88\ns_load_dwordx2 s[18:19], s[0:1], 40")
    ids(A)
    A("s_and_b32 s20, s2, 3\ns_lshr_b32 s21, s2, 2")
    tables_ptr(A, 16, "k3")
    A("s_waitcnt lgkmcnt(0)")
    srd(A, 8, 4, 0x200000); srd(A, 12, 6, 0x10000000); srd(A, 32, 6, WP_BYTES, WS_W1P); srd(A, 36, 18, 2752)
    ZF = 16
    A(f"""v_lshlrev_b32 v7, 12, v6
    v_lshl_add_u32 v7, v5, 4, v7
    s_lshl_b32 s26, s21, 15
    s_lshl_b32 s27, s3, 10
    s_add_u32 s26, s26, s27
    s_add_u32 s26, s26, {WS_Z}
    s_add_u32 s27, s26, 16384""")
    for e in range(4):
        for t in range(2): A(f"buffer_load_dwordx4 {v(ZF+8*e+4*t,4)}, v7, s[12:15], {s(26+t)} offen offset:{256*e}")
    load_x_lds(A, 8, 21, 3, 2, 22)
    A(f"""v_lshlrev_b32 v7, 4, v3
    v_lshl_add_u32 v7, v4, 11, v7
    s_lshl_b32 s22, s3, 9
    s_add_u32 s24, s22, {3*2048}
    s_lshl_b32 s23, s3, 10
    s_add_u32 s23, s23, {L_P}
    s_mov_b32 m0, s23
    buffer_load_dwordx4 v7, s[12:15], s24 offen lds
    v_lshlrev_b32 v7, 2, v3
    s_add_u32 s24, s22, {2*2048}""")
    GA = 12
    for aa in range(4): A(f"buffer_load_dword {v(GA+aa)}, v7, s[12:15], s24 offen offset:{128*aa}")
    I1 = 48
    A(f"""s_cmp_eq_u32 s3, 0
    s_cselect_b32 s25, 0, 2048
    v_add_u32 v8, s25, v2
    v_add_u32 v9, {TAB_I1}, v2
    v_add_u32 v8, {TAB_I1}, v8""")
    A(f"global_load_dwordx4 {v(I1,4)}, v8, s[16:17]\nglobal_load_dwordx4 {v(I1+4,4)}, v8, s[16:17] offset:1024")
    A(f"global_load_dwordx4 {v(I1+8,4)}, v9, s[16:17] offset:2048\nglobal_load_dwordx4 {v(I1+12,4)}, v9, s[16:17] offset:3072")
    BI = 208
    A(f"""s_mul_i32 s28, s20, 11
    s_add_u32 s28, s28, s3
    v_lshlrev_b32 v8, 3, v4""")
    for i in range(3):
        A(f"s_add_u32 s29, s28, {4*((i+2)%3)}\ns_lshl_b32 s29, s29, 6")
        for j in range(4): A(f"buffer_load_dwordx2 {v(224+8*i+2*j,2)}, v8, s[36:39], s29 offen offset:{16*j}")
    A(f"s_lshl_b32 s29, s28, 15\ns_add_u32 s30, s29, {8<<15}\ns_lshl_b32 s31, s3, 15\ns_add_u32 s31, s31, {L_W}\ns_cmp_eq_u32 s3, 3\ns_cbranch_scc1 L_k3_now3")
    A.begin_cond()
    for i in range(8):
        A("s_mov_b32 m0, s31")
        for u in range(4): A(f"buffer_load_dwordx4 v2, s[32:35], s30 offen offset:{1024*u} lds")
        A("s_add_u32 s30, s30, 4096\ns_add_u32 s31, s31, 4096")
    A.end_cond()
    A("L_k3_now3:")
    for i in range(2):
        for ks in range(32):
            A(f"buffer_load_dwordx4 {a(128*i+4*ks,4)}, v2, s[32:35], s29 offen offset:{1024*(ks&3)}")
            if ks & 3 == 3: A(f"s_add_u32 s29, s29, {4096 if ks < 31 else 4096 + (3<<15)}")
    SA, T = 64, 192
    for nh in range(2):
        A(f"""v_add_u32 v9, {16*nh}, v5
        v_lshlrev_b32 v9, 6, v9
        v_add_u32 v9, s21, v9
        v_cvt_f32_u32 v9, v9
        v_mul_f32 v10, {fhex(1/2048)}, v9
        v_lshlrev_b32 v9, 2, v6
        v_cvt_f32_u32 v9, v9
        v_mul_f32 v9, v9, v10""")
        ks = [16 * t + e for t in range(2) for e in range(4)]
        gen_cs_frags(A, 9, 10, ks, [SA + 8 * nh + i for i in range(8)], [SA + 16 + 8 * nh + i for i in range(8)], T, +1)
    I2 = 96
    A("s_mov_b32 s40, -1\ns_mov_b32 s41, 0\nv_and_b32 v11, 1, v3\nv_cvt_f32_u32 v11, v11\nv_fma_f32 v11, v11, -2.0, 1.0")
    for aa in range(4):
        A(f"""s_lshl_b32 s24, s3, 2
        s_add_u32 s24, s24, {aa}
        v_lshl_add_u32 v9, v3, 4, s24
        v_cvt_f32_u32 v9, v9
        v_mul_f32 v10, {fhex(1/512)}, v9
        v_lshlrev_b32 v9, 2, v4
        v_cvt_f32_u32 v9, v9
        v_mul_f32 v9, v9, v10""")
        for t in range(2):
            for e in range(4):
                k = 8 * t + e
                A(f"v_fmamk_f32 {v(T+3*e)}, v10, {fhex(k)}, v9" if k else f"v_mov_b32 {v(T+3*e)}, v9")
            for e in range(4): A(f"v_cos_f32 {v(T+3*e+1)}, {v(T+3*e)}\nv_sin_f32 {v(T+3*e+2)}, {v(T+3*e)}")
            if t == 0: A(f"v_cndmask_b32 {v(T+2)}, {v(T+2)}, -v11, s[40:41]")
            for e in range(4): A(f"v_mul_f32 {v(T+3*e+1)}, {v(T+3*e+1)}, {v(GA+aa)}\nv_mul_f32 {v(T+3*e+2)}, {v(T+3*e+2)}, {v(GA+aa)}")
            for e in range(4): A(f"v_cvt_pk_bf16_f32 {v(I2+8*aa+4*t+e)}, {v(T+3*e+1)}, -{v(T+3*e+2)}")
    X, P = 128, 192
    A(f"""v_mul_u32_u24 v9, {XS}, v3
    v_lshl_add_u32 v9, v4, 7, v9
    s_lshl_b32 s26, s3, 3
    v_add_u32 v9, s26, v9
    s_waitcnt vmcnt(63)
    s_barrier""")
    read_x_unpack(A, X, P, 9)
    A("s_waitcnt lgkmcnt(0)\ns_barrier")
    ACA, Y, AC1, VS = 192, 208, 192, 16
    VS = 248 - 32
    for i in range(3):
        pass
    return_lds = L_W + 98304
    ST = 16
    for e in range(4):
        for nh in range(2):
            for c in range(2):
                for t in range(2): mfma16(A, v(ACA + 8 * nh + 4 * c, 4), v(ZF + 8 * e + 4 * t, 4), v(SA + 16 * c + 8 * nh + 4 * t, 4), "0" if t == 0 else None)
        for nh in range(2):
            for r in range(4): A(f"v_cvt_pk_bf16_f32 {v(Y+4*nh+r)}, {v(ACA+8*nh+r)}, {v(ACA+8*nh+4+r)}")
        mat = I1 if e == 0 else I1 + 8
        for nh in range(2):
            for mt in range(2): mfma16(A, v(AC1 + 8 * nh + 4 * mt, 4), v(mat + 4 * mt, 4), v(Y + 4 * nh, 4), "0")
        for nh in range(2):
            for mt in range(2):
                for u in range(2):
                    A(f"v_cvt_pk_bf16_f32 {v(216+0)}, {v(AC1+8*nh+4*mt+2*u)}, {v(AC1+8*nh+4*mt+2*u+1)}".replace(v(216), v(216 + (4*nh+2*mt+u))))
        if e == 0:
            A(f"""v_lshlrev_b32 v9, 12, v6
            v_lshl_add_u32 v9, v5, 4, v9
            s_lshl_b32 s26, s3, 9
            v_add_u32 v9, s26, v9""")
        for nh in range(2):
            for mt in range(2):
                for u in range(2):
                    A(f"ds_write_b32 v9, {v(216+4*nh+2*mt+u)} offset:{L_H+(8*mt+u)*2048+nh*256+4*e}")
    A(f"""v_lshlrev_b32 v10, 9, v4
    v_lshl_add_u32 v10, v3, 4, v10
    s_lshl_b32 s26, s3, 13
    v_add_u32 v10, s26, v10
    s_waitcnt lgkmcnt(0)
    s_barrier""")
    BF = 16
    for aa in range(4):
        for t in range(2): A(f"ds_read_b128 {v(BF+8*aa+4*t,4)}, v10 offset:{L_H+aa*2048+t*1024}")
    for aa in range(4):
        for t in range(2): mfma32(A, v(X + 16 * aa, 16), v(I2 + 8 * aa + 4 * t, 4), v(BF + 8 * aa + 4 * t, 4))
    A(f"""v_mul_u32_u24 v10, 80, v3
    v_lshl_add_u32 v11, v4, 3, v10
    s_lshl_b32 s26, s3, 4
    v_add_u32 v11, s26, v11
    v_lshlrev_b32 v12, 4, v4
    v_add_u32 v12, s23, v12""")
    row_stats(A, X, 48, L_ST, 11, 10, 14, 15)
    A(f"""v_lshlrev_b32 v9, 13, v4
    v_lshl_add_u32 v9, v3, 4, v9
    s_lshr_b32 s26, s3, 1
    s_lshl_b32 s26, s26, 10
    s_and_b32 s27, s3, 1
    s_lshl_b32 s27, s27, 9
    s_add_u32 s26, s26, s27
    v_add_u32 v9, s26, v9""")
    for qq in range(4):
        A(f"s_cmp_lg_u32 s20, {qq}\ns_cbranch_scc1 L_k3_x{qq}")
        A.begin_cond()
        for r in range(4):
            for aa in range(4):
                A(f"ds_write_b32 v9, {v(X+16*aa+4*qq+r)} offset:{L_R+(r>>1)*4096+(r&1)*2048+4*aa}")
        A.end_cond()
        A(f"L_k3_x{qq}:")
    A(f"s_lshl_b32 s26, s3, 13\nv_add_u32 v9, s26, v2")
    H = 64
    def after(aa):
        for t in range(2): A(f"ds_write_b128 v9, {v(H+8*aa+4*t,4)} offset:{L_H+aa*2048+t*1024}")
    modulate(A, X, 14, 15, 12, 0, 16, lambda aa: H + 8 * aa, after)
    AC = [16, 32, 48]
    for i in range(3):
        for j in range(4):
            for hp in range(2): unpack(A, AC[i] + 4 * j + 2 * hp, AC[i] + 4 * j + 2 * hp + 1, 224 + 8 * i + 2 * j + hp)
    A(f"""s_lshl_b32 s26, s3, 12
    v_add_u32 v10, s26, v2
    s_lshl_b32 s26, s3, 15
    s_add_u32 s26, s26, {L_W}
    v_add_u32 v11, s26, v2
    s_waitcnt vmcnt(0) lgkmcnt(0)
    s_barrier""")
    for j in range(4): A(f"ds_read_b128 {v(192+4*j,4)}, v10 offset:{L_R+1024*j}")
    A(f"""s_lshl_b32 s26, s2, 14
    s_add_u32 s26, s26, {WS_X1R}""")
    for j in range(4): A(f"buffer_store_dwordx4 {v(192+4*j,4)}, v10, s[12:15], s26 offen offset:{1024*j}")
    A(f"""s_mul_i32 s26, s21, {88*1024}
    s_lshl_b32 s27, s28, 11
    s_add_u32 s26, s26, s27
    s_add_u32 s26, s26, {WS_ACT}""")
    B0, A0, MT, OUT = 64, 96, 128, 136
    def tile(i):
        for ks in range(32):
            for k2 in ([0, 1, 2, 3] if ks == 0 else [ks + 3] if ks + 3 < 32 else []):
                A(f"ds_read_b128 {v(B0+4*(k2&7),4)}, v2 offset:{L_H+1024*k2}")
                if i == 0: A(f"ds_read_b128 {v(A0+4*(k2&7),4)}, v11 offset:{1024*k2}")
            aop = v(A0 + 4 * (ks & 7), 4) if i == 0 else a(128 * (i - 1) + 4 * ks, 4)
            mfma32(A, v(AC[i], 16), aop, v(B0 + 4 * (ks & 7), 4))
        mish_tile(A, AC[i], MT, OUT)
        A(f"s_add_u32 s27, s26, {2048*4*((i+2)%3)}")
        for t in range(2): A(f"buffer_store_dwordx4 {v(OUT+4*t,4)}, v2, s[12:15], s27 offen offset:{1024*t}")
    A("s_cmp_eq_u32 s3, 3\ns_cbranch_scc1 L_k3_t1")
    A.begin_cond(); tile(0); A.end_cond()
    A("L_k3_t1:")
    tile(1); tile(2)
    epilogue(A, n)
    A.raw(kernel_desc(n, 512, 256))
    return return_lds

def k4(A):
    n = "k4_kernel"
    prologue(A, n, 256)
    A("s_load_dwordx2 s[4:5], s[0:1], 72\ns_load_dwordx2 s[6:7], s[0:1], 88")
    ids(A)
    A("s_and_b32 s20, s2, 3\ns_lshr_b32 s21, s2, 2\ns_waitcnt lgkmcnt(0)")
    srd(A, 8, 4, 0x200000); srd(A, 12, 6, 0x10000000); srd(A, 32, 6, WP_BYTES, WS_W2P)
    A(f"""s_mul_i32 s26, s21, {88*1024}
    s_mul_i32 s27, s3, {22*1024}
    s_add_u32 s26, s26, s27
    s_add_u32 s26, s26, {WS_ACT}""")
    for i in range(22):
        if i % 4 == 0: A("s_mov_b32 m0, s27")
        A(f"buffer_load_dwordx4 v2, s[12:15], s26 offen offset:{1024*(i%4)} lds")
        if i % 4 == 3: A("s_add_u32 s26, s26, 4096\ns_add_u32 s27, s27, 4096")
    A(f"""s_lshl_b32 s26, s3, 12
    v_add_u32 v10, s26, v2
    s_lshl_b32 s26, s2, 14
    s_add_u32 s26, s26, {WS_X1R}""")
    XR, GB, AC, B0, W0 = 16, 32, 48, 64, 96
    for j in range(4): A(f"buffer_load_dwordx4 {v(XR+4*j,4)}, v10, s[12:15], s26 offen offset:{1024*j}")
    A(f"""s_lshl_b32 s26, s20, 2
    s_add_u32 s26, s26, s3
    s_lshl_b32 s27, s26, 7
    s_add_u32 s27, s27, {5*2048}
    v_lshlrev_b32 v10, 4, v4""")
    for j in range(4): A(f"buffer_load_dwordx4 {v(GB+4*j,4)}, v10, s[12:15], s27 offen offset:{32*j}")
    A("s_lshl_b32 s27, s26, 10")
    wreg = lambda i: a(4 * i, 4) if i < 64 else v(W0 + 4 * (i - 64), 4)
    for i in range(88):
        A(f"buffer_load_dwordx4 {wreg(i)}, v2, s[32:35], s27 offen\ns_add_u32 s27, s27, 16384")
        if i == 50: A("s_waitcnt vmcnt(59)\ns_barrier")
    for ks in range(88):
        for k2 in ([0, 1, 2, 3] if ks == 0 else [ks + 3] if ks + 3 < 88 else []):
            if k2 < 64: A(f"ds_read_b128 {v(B0+4*(k2&7),4)}, v2 offset:{1024*k2}")
            else:
                if k2 == 64: A("v_add_u32 v11, 0x10000, v2")
                A(f"ds_read_b128 {v(B0+4*(k2&7),4)}, v11 offset:{1024*(k2-64)}")
        mfma32(A, v(AC, 16), wreg(ks), v(B0 + 4 * (ks & 7), 4), "0" if ks == 0 else None)
    A(f"""v_lshlrev_b32 v10, 16, v3
    v_lshl_add_u32 v10, v4, 4, v10
    s_lshl_b32 s27, s21, 10
    s_lshl_b32 s26, s26, 6
    s_add_u32 s27, s27, s26""")
    for i in range(0, 16, 2): A(f"v_pk_fma_f32 {v(AC+i,2)}, {v(AC+i,2)}, {v(GB+i,2)}, {v(XR+i,2)}")
    for i in range(8): A(f"v_cvt_pk_bf16_f32 {v(B0+i)}, {v(AC+2*i)}, {v(AC+2*i+1)}")
    for jp in range(2):
        for x in range(2): A(f"v_permlane32_swap_b32 {v(B0+4*jp+x)}, {v(B0+4*jp+2+x)}")
        A(f"buffer_store_dwordx4 {v(B0+4*jp,4)}, v10, s[8:11], s27 offen offset:{32*jp}")
    epilogue(A, n)
    A.raw(kernel_desc(n, 512, 256))
    return 88 * 1024

def build(fn):
    A = Asm()
    k0(A); l1 = k1(A); l2 = k2(A); l3 = k3(A); l4 = k4(A)
    hdr = [f"; @launch kernel=k0_kernel grid=(524,1,1) block=(256,1,1) lds=2048",
           f"; @launch kernel=k1_kernel grid=(256,1,1) block=(256,1,1) lds={l1}",
           f"; @launch kernel=k2_kernel grid=(256,1,1) block=(256,1,1) lds={l2}",
           f"; @launch kernel=k3_kernel grid=(256,1,1) block=(256,1,1) lds={l3}",
           f"; @launch kernel=k4_kernel grid=(256,1,1) block=(256,1,1) lds={l4}",
           '.amdgcn_target "amdgcn-amd-amdhsa--gfx950"', ".text"]
    open(fn, "w").write("\n".join(hdr) + "\n" + A.finalize() + "\n" + emit_tables() + "\n")

if __name__ == "__main__":
    build(sys.argv[1] if len(sys.argv) > 1 else "v1.s")
```

```python
import numpy as np, struct
from asmlib import *
import model

NAME = "adaLN_cond__spectral_gfnet__dense_activation_mish__prompt"
WS_MODP = 0x0
WS_X1 = 0x100000
WS_SIDE = 0x380000
WS_Z = 0x400000
WS_WP = 0x700000
WS_VP = 0x900000
WS_W1P = 0xA00000
WS_W2P = 0xC00000
WS_ACT = 0x1000000
WS_X1R = 0x1800000
WP_BYTES = 43 * 32 * 1024
OOB = 0x7FFFFF00

def fhex(x): return "0x%08x" % struct.unpack("<I", struct.pack("<f", float(x)))[0]
def bfbits(x): return (model.bf(np.asarray(x, np.float32)).view(np.uint32) >> 16).astype(np.uint32)

def table_F1():
    F1 = model.mat_F1(); T = np.zeros((2, 2, 64, 4), np.uint32)
    for vv in range(2):
        for c in range(2):
            for l in range(64):
                m, g = l & 15, l >> 4
                for i in range(4):
                    d1 = 4 * g + i
                    T[vv, c, l, i] = bfbits(F1[vv, d1, 0, m, c]) | (bfbits(F1[vv, d1, 1, m, c]) << 16)
    return T
def table_I1():
    I1 = model.mat_I1() * model.WSCALE; T = np.zeros((2, 2, 64, 4), np.uint32)
    for vv in range(2):
        for mt in range(2):
            for l in range(64):
                rho, g = l & 15, l >> 4
                d1, c = 8 * mt + (rho >> 1), rho & 1
                for r in range(4):
                    m = 4 * g + r
                    T[vv, mt, l, r] = bfbits(I1[vv, m, 0, d1, c]) | (bfbits(I1[vv, m, 1, d1, c]) << 16)
    return T
def emit_tables():
    t = np.concatenate([table_F1().ravel(), table_I1().ravel()])
    lines = [".p2align 8", ".type L_tables,@object", "L_tables:"]
    for i in range(0, len(t), 8):
        lines.append(".long " + ",".join("0x%08x" % x for x in t[i:i + 8]))
    lines.append(f".size L_tables, {4*len(t)}")
    return "\n".join(lines)
TAB_F1, TAB_I1 = 0, 4096

def srd(A, d, base, nbytes, off=0):
    if off:
        A(f"s_add_u32 {s(d)}, {s(base)}, {hex(off)}\ns_addc_u32 {s(d+1)}, {s(base+1)}, 0")
    else:
        A(f"s_mov_b32 {s(d)}, {s(base)}\ns_mov_b32 {s(d+1)}, {s(base+1)}")
    A(f"s_mov_b32 {s(d+2)}, {hex(nbytes)}\ns_mov_b32 {s(d+3)}, 0x20000")

def tables_ptr(A, d, tag):
    A(f"s_getpc_b64 {s(d,2)}")
    A(f"L_pc_{tag}:")
    A(f"s_add_u32 {s(d)}, {s(d)}, L_tables-L_pc_{tag}\ns_addc_u32 {s(d+1)}, {s(d+1)}, 0")

PROF = False
WS_PROF = 0x2000000
def stamp(A, i):
    if PROF: A.raw(f"    s_memrealtime s[{80+2*i}:{81+2*i}]")

def prologue(A, name, nwg):
    A.raw(f".globl {name}\n.p2align 8\n.type {name},@function\n{name}:")
    A.reset_state()
    if PROF:
        for i in range(1, 8): A.raw(f"    s_mov_b32 s{80+2*i}, 0")
    stamp(A, 0)
    A(f"s_cmp_ge_u32 s2, {nwg}\ns_cbranch_scc1 L_exit_{name}")

def epilogue(A, name, kidx=0):
    A(f"L_end_{name}:")
    if PROF:
        A.raw("    s_waitcnt vmcnt(0)")
        stamp(A, 7)
        t = f"""s_mov_b64 exec, -1
        s_load_dwordx2 s[76:77], s[0:1], 88
        v_mbcnt_lo_u32_b32 v1, -1, 0
        v_mbcnt_hi_u32_b32 v1, -1, v1
        s_waitcnt lgkmcnt(0)
        s_mov_b32 s78, 0x10000000
        s_mov_b32 s79, 0x20000
        s_lshl_b32 s75, s2, 7
        s_lshl_b32 s74, s3, 5
        s_add_u32 s75, s75, s74
        s_add_u32 s75, s75, {WS_PROF + kidx * 0x20000}
        v_mov_b32 v2, 0
        """ + "\n".join(f"v_mov_b32 v{4+i}, s{80+2*i}" for i in range(8)) + """
        v_cmp_eq_u32 vcc, 0, v1
        s_nop 1
        s_and_b64 exec, exec, vcc
        buffer_store_dwordx4 v[4:7], v2, s[76:79], s75 offen
        buffer_store_dwordx4 v[8:11], v2, s[76:79], s75 offen offset:16"""
        A.raw("\n".join("    " + x.strip() for x in t.split("\n")))
    A(f"L_exit_{name}:\ns_endpgm")

def unpack(A, lo, hi, src):
    A(f"v_lshlrev_b32 {v(lo)}, 16, {v(src)}\nv_and_b32 {v(hi)}, 0xffff0000, {v(src)}")

def gen_cs_frags(A, al, be, ks, dst_re, dst_im, tmp, sign):
    n = len(ks)
    for i0 in range(0, n, 4):
        idx = list(range(i0, min(n, i0 + 4)))
        for u, i in enumerate(idx):
            if ks[i] == 0: A(f"v_mov_b32 {v(tmp+3*u)}, {v(al)}")
            else: A(f"v_fmamk_f32 {v(tmp+3*u)}, {v(be)}, {fhex(ks[i])}, {v(al)}")
        for u, i in enumerate(idx):
            A(f"v_cos_f32 {v(tmp+3*u+1)}, {v(tmp+3*u)}\nv_sin_f32 {v(tmp+3*u+2)}, {v(tmp+3*u)}")
        for u, i in enumerate(idx):
            c, sn = v(tmp + 3 * u + 1), v(tmp + 3 * u + 2)
            if sign < 0:
                A(f"v_cvt_pk_bf16_f32 {v(dst_re[i])}, {c}, {sn}\nv_cvt_pk_bf16_f32 {v(dst_im[i])}, -{sn}, {c}")
            else:
                A(f"v_cvt_pk_bf16_f32 {v(dst_re[i])}, {c}, -{sn}\nv_cvt_pk_bf16_f32 {v(dst_im[i])}, {sn}, {c}")

def mfma32(A, d, x, y, c=None):
    A(f"v_mfma_f32_32x32x16_bf16 {d}, {x}, {y}, {c if c is not None else d}")
def mfma16(A, d, x, y, c=None):
    A(f"v_mfma_f32_16x16x32_bf16 {d}, {x}, {y}, {c if c is not None else d}")

def row_stats(A, X, T, lds_base, v_addr_w, v_addr_r, v_r, v_mr):
    A(f"v_pk_add_f32 {v(T,2)}, {v(X,2)}, {v(X+2,2)}\nv_pk_mul_f32 {v(T+2,2)}, {v(X,2)}, {v(X,2)}")
    A(f"v_pk_add_f32 {v(T+4,2)}, {v(X+4,2)}, {v(X+6,2)}\nv_pk_mul_f32 {v(T+6,2)}, {v(X+2,2)}, {v(X+2,2)}")
    A(f"v_pk_fma_f32 {v(T+2,2)}, {v(X+4,2)}, {v(X+4,2)}, {v(T+2,2)}\nv_pk_fma_f32 {v(T+6,2)}, {v(X+6,2)}, {v(X+6,2)}, {v(T+6,2)}")
    for i in range(8, 64, 4):
        A(f"v_pk_add_f32 {v(T,2)}, {v(T,2)}, {v(X+i,2)}\nv_pk_fma_f32 {v(T+2,2)}, {v(X+i,2)}, {v(X+i,2)}, {v(T+2,2)}")
        A(f"v_pk_add_f32 {v(T+4,2)}, {v(T+4,2)}, {v(X+i+2,2)}\nv_pk_fma_f32 {v(T+6,2)}, {v(X+i+2,2)}, {v(X+i+2,2)}, {v(T+6,2)}")
    A(f"v_pk_add_f32 {v(T,2)}, {v(T,2)}, {v(T+4,2)}\nv_pk_add_f32 {v(T+2,2)}, {v(T+2,2)}, {v(T+6,2)}")
    A(f"v_add_f32 {v(T)}, {v(T)}, {v(T+1)}\nv_add_f32 {v(T+1)}, {v(T+2)}, {v(T+3)}")
    A(f"ds_write_b64 {v(v_addr_w)}, {v(T,2)} offset:{lds_base}")
    A("s_waitcnt lgkmcnt(0)\ns_barrier")
    for i in range(2):
        A(f"ds_read_b128 {v(T+4*i,4)}, {v(v_addr_r)} offset:{lds_base+16*i}")
    P = T + 8
    for i in range(2):
        A(f"ds_read_b128 {v(P+4*i,4)}, {v(v_addr_r)} offset:{lds_base+32+16*i}")
    A(f"v_pk_add_f32 {v(T,2)}, {v(T,2)}, {v(T+2,2)}\nv_pk_add_f32 {v(T+4,2)}, {v(T+4,2)}, {v(T+6,2)}")
    A(f"v_pk_add_f32 {v(P,2)}, {v(P,2)}, {v(P+2,2)}\nv_pk_add_f32 {v(P+4,2)}, {v(P+4,2)}, {v(P+6,2)}")
    A(f"v_pk_add_f32 {v(T,2)}, {v(T,2)}, {v(T+4,2)}\nv_pk_add_f32 {v(P,2)}, {v(P,2)}, {v(P+4,2)}")
    A(f"v_pk_add_f32 {v(T,2)}, {v(T,2)}, {v(P,2)}")
    A(f"v_mul_f32 {v(T)}, {fhex(1/512)}, {v(T)}\nv_mul_f32 {v(T+1)}, {fhex(1/512)}, {v(T+1)}")
    A(f"v_fma_f32 {v(T+1)}, -{v(T)}, {v(T)}, {v(T+1)}")
    A(f"v_max_f32 {v(T+1)}, 0, {v(T+1)}\nv_add_f32 {v(T+1)}, {fhex(1e-5)}, {v(T+1)}")
    A(f"v_rsq_f32 {v(v_r)}, {v(T+1)}")
    A(f"v_mul_f32 {v(v_mr)}, -{v(T)}, {v(v_r)}")
```

```python
import sys
import common
from common import *

def k0(A):
    n = "k0_kernel"
    prologue(A, n, 524)
    A("""s_load_dwordx4 s[4:7], s[0:1], 8
    s_load_dwordx4 s[8:11], s[0:1], 32
    s_load_dwordx4 s[12:15], s[0:1], 48
    s_load_dwordx2 s[16:17], s[0:1], 64
    s_load_dwordx2 s[18:19], s[0:1], 88
    s_waitcnt lgkmcnt(0)""")
    srd(A, 20, 18, 0x10000000)
    A("v_lshrrev_b32 v1, 6, v0\nv_readfirstlane_b32 s3, v1")
    A("s_cmp_lt_u32 s2, 96\ns_cbranch_scc1 L_k0_mod\ns_cmp_lt_u32 s2, 268\ns_cbranch_scc1 L_k0_w\ns_branch L_k0_W")
    A("L_k0_mod:"); A.reset_state()
    srd(A, 24, 14, 1024); srd(A, 28, 16, 512 * 6144)
    A("""v_lshrrev_b32 v1, 2, v0
    v_and_b32 v2, 3, v0
    v_lshlrev_b32 v3, 1, v1
    v_mul_u32_u24 v4, 6144, v1
    v_lshl_add_u32 v4, v2, 4, v4
    s_lshl_b32 s32, s2, 6""")
    for i in range(8): A(f"buffer_load_ushort v{8+i}, v3, s[24:27], 0 offen offset:{128*i}")
    for i in range(8):
        A(f"buffer_load_dwordx4 {v(16+4*i,4)}, v4, s[28:31], s32 offen")
        if i < 7: A(f"s_add_u32 s32, s32, {64*6144}")
    for i in range(8):
        A(f"v_lshlrev_b32 v{8+i}, 16, v{8+i}\nv_mul_f32 v50, {fhex(-1.4426950408889634)}, v{8+i}\nv_exp_f32 v50, v50")
        A(f"v_add_f32 v50, 1.0, v50\nv_rcp_f32 v50, v50\nv_mul_f32 v50, v{8+i}, v50\nv_cvt_pk_bf16_f32 v50, v50, v50\nv_lshlrev_b32 v{8+i}, 16, v50")
    for i in range(8):
        for j in range(4):
            unpack(A, 50, 51, 16 + 4 * i + j)
            if i == 0: A(f"v_mul_f32 v{52+2*j}, v50, v8\nv_mul_f32 v{53+2*j}, v51, v8")
            else: A(f"v_fmac_f32 v{52+2*j}, v50, v{8+i}\nv_fmac_f32 v{53+2*j}, v51, v{8+i}")
    for sh in (4, 8):
        for j in range(8): A(f"v_add_f32_dpp v{52+j}, v{52+j}, v{52+j} row_ror:{sh} row_mask:0xf bank_mask:0xf")
    A("""v_lshrrev_b32 v1, 4, v0
    v_lshlrev_b32 v1, 7, v1
    v_lshl_add_u32 v1, v2, 5, v1
    ds_write_b128 v1, v[52:55]
    ds_write_b128 v1, v[56:59] offset:16
    s_waitcnt lgkmcnt(0)
    s_barrier
    v_cmp_gt_u32 vcc, 32, v0
    s_and_saveexec_b64 s[34:35], vcc
    s_cbranch_execz L_end_k0_kernel
    v_lshlrev_b32 v1, 2, v0""")
    for i in range(16): A(f"ds_read_b32 v{8+i}, v1 offset:{128*i}")
    for st in (8, 4, 2, 1):
        for i in range(st): A(f"v_add_f32 v{8+i}, v{8+i}, v{8+st+i}")
    A("""v_cvt_pk_bf16_f32 v8, v8, v8
    v_lshlrev_b32 v8, 16, v8
    s_lshr_b32 s33, s2, 4
    s_cmp_eq_u32 s33, 1
    s_cselect_b32 s36, 1.0, 0
    s_cmp_eq_u32 s33, 4
    s_cselect_b32 s36, 1.0, s36
    v_add_f32 v8, s36, v8
    v_cvt_pk_bf16_f32 v8, v8, v8
    v_lshlrev_b32 v8, 16, v8
    s_and_b32 s37, s2, 15
    s_lshl_b32 s37, s37, 5
    v_add_u32 v2, s37, v0
    v_and_b32 v3, 15, v2
    v_lshlrev_b32 v3, 5, v3
    v_lshrrev_b32 v4, 4, v2
    v_add_u32 v3, v3, v4
    s_cmp_eq_u32 s33, 5
    s_cselect_b64 vcc, -1, 0
    v_cndmask_b32 v3, v3, v2, vcc
    v_lshlrev_b32 v3, 2, v3
    s_lshl_b32 s33, s33, 11
    buffer_store_dword v8, v3, s[20:23], s33 offen
    s_branch L_end_k0_kernel""")
    A("L_k0_w:"); A.reset_state()
    A("s_cmp_lt_u32 s2, 182\ns_cbranch_scc0 L_k0_w2")
    srd(A, 24, 8, 512 * 2752)
    A(f"""s_sub_u32 s32, s2, 96
    s_lshl_b32 s32, s32, 8
    v_add_u32 v1, s32, v0
    s_mov_b32 s33, {(1<<32)//344+1}
    v_mul_hi_u32 v2, v1, s33
    v_mul_u32_u24 v3, 344, v2
    v_sub_u32 v3, v1, v3
    v_lshrrev_b32 v4, 2, v2
    v_and_b32 v5, 3, v2
    v_lshrrev_b32 v6, 1, v5
    v_and_b32 v5, 1, v5
    v_lshlrev_b32 v6, 8, v6
    v_lshl_add_u32 v6, v5, 6, v6
    v_add_u32 v6, v6, v4
    v_mul_u32_u24 v6, 2752, v6
    v_lshl_add_u32 v6, v3, 3, v6
    v_lshrrev_b32 v7, 3, v3
    v_lshlrev_b32 v7, 15, v7
    v_lshrrev_b32 v4, 1, v2
    v_lshl_add_u32 v7, v4, 10, v7
    v_lshl_add_u32 v7, v5, 9, v7
    v_and_b32 v4, 7, v3
    v_lshl_add_u32 v7, v4, 6, v7
    s_mov_b32 s34, {WS_W1P}""")
    for i in range(8):
        A(f"s_mov_b32 s35, {(16*(8*(i>>2)+(i&3)))*2752}\nbuffer_load_dwordx2 {v(8+2*i,2)}, v6, s[24:27], s35 offen")
    A("s_branch L_k0_tr")
    A("L_k0_w2:"); A.reset_state()
    srd(A, 24, 12, 1376 * 1024)
    A(f"""s_sub_u32 s32, s2, 182
    s_lshl_b32 s32, s32, 8
    v_add_u32 v1, s32, v0
    v_lshrrev_b32 v2, 7, v1
    v_and_b32 v3, 127, v1
    v_lshrrev_b32 v4, 1, v2
    v_and_b32 v5, 1, v2
    v_lshlrev_b32 v6, 4, v4
    v_lshl_add_u32 v6, v5, 2, v6
    v_lshlrev_b32 v6, 10, v6
    v_lshl_add_u32 v6, v3, 3, v6
    v_lshlrev_b32 v7, 14, v4
    v_lshrrev_b32 v4, 3, v3
    v_lshl_add_u32 v7, v4, 10, v7
    v_lshl_add_u32 v7, v5, 9, v7
    v_and_b32 v4, 7, v3
    v_lshl_add_u32 v7, v4, 6, v7
    s_mov_b32 s34, {WS_W2P}""")
    for i in range(8):
        A(f"s_mov_b32 s35, {(8*(i>>2)+(i&3))*1024}\nbuffer_load_dwordx2 {v(8+2*i,2)}, v6, s[24:27], s35 offen")
    A("L_k0_tr:\ns_waitcnt vmcnt(0)\ns_mov_b32 s36, 0x05040100\ns_mov_b32 s37, 0x07060302"); A.reset_state()
    for i in range(4):
        for p in range(4):
            A(f"v_perm_b32 v{24+4*i+p}, v{8+2*(2*p+1)+(i>>1)}, v{8+2*(2*p)+(i>>1)}, s{36+(i&1)}")
        A(f"buffer_store_dwordx4 {v(24+4*i,4)}, v7, s[20:23], s34 offen offset:{16*i}")
    A("s_branch L_end_k0_kernel")
    A("L_k0_W:"); A.reset_state()
    srd(A, 24, 4, 2048 * 514); srd(A, 28, 6, 2048 * 514)
    A(f"""s_sub_u32 s32, s2, 268
    s_lshr_b32 s33, s32, 4
    s_and_b32 s34, s32, 15
    s_lshl_b32 s34, s34, 1
    v_lshrrev_b32 v1, 4, v0
    v_and_b32 v2, 15, v0
    v_lshlrev_b32 v3, 5, v2
    v_add_u32 v4, v3, v1
    v_sub_u32 v5, 512, v4
    v_subrev_u32 v6, 240, v3
    v_cmp_eq_u32 vcc, 0, v1
    v_cndmask_b32 v5, v5, v6, vcc
    v_cmp_gt_u32 vcc, 8, v2
    v_cndmask_b32 v4, v5, v4, vcc
    v_lshlrev_b32 v4, 1, v4
    s_lshl_b32 s35, s33, 7
    s_add_u32 s35, s35, s34
    s_mul_i32 s36, s35, 514""")
    for i in range(2):
        for r in range(4):
            A(f"s_add_u32 s37, s36, {(i+32*r)*514}")
            A(f"buffer_load_ushort v{8+4*i+r}, v4, s[24:27], s37 offen\nbuffer_load_ushort v{16+4*i+r}, v4, s[28:31], s37 offen")
    A(f"""s_lshr_b32 s38, s34, 2
    s_lshl_b32 s38, s38, 18
    s_lshl_b32 s39, s33, 8
    s_add_u32 s38, s38, s39
    s_and_b32 s39, s34, 3
    s_lshl_b32 s39, s39, 4
    s_add_u32 s38, s38, s39
    s_add_u32 s38, s38, {WS_WP}
    v_lshrrev_b32 v5, 2, v0
    v_lshlrev_b32 v5, 12, v5
    v_and_b32 v6, 3, v0
    v_lshl_add_u32 v5, v6, 6, v5
    v_mov_b32 v6, {OOB}
    v_cmp_eq_u32 vcc, 0, v0
    v_cndmask_b32 v5, v5, v6, vcc""")
    for i in range(8): A(f"v_lshl_or_b32 v{8+i}, v{16+i}, 16, v{8+i}")
    for i in range(2): A(f"buffer_store_dwordx4 {v(8+4*i,4)}, v5, s[20:23], s38 offen offset:{16*i}")
    A(f"""v_cmp_gt_u32 vcc, 8, v0
    s_and_saveexec_b64 s[40:41], vcc
    s_cbranch_execz L_end_k0_kernel
    v_lshrrev_b32 v1, 2, v0
    v_and_b32 v2, 3, v0
    v_lshl_add_u32 v3, v2, 5, v1
    v_add_u32 v3, s35, v3
    v_sub_u32 v4, 2048, v3
    v_and_b32 v4, 2047, v4
    v_mul_u32_u24 v3, 514, v3
    v_mul_u32_u24 v4, 514, v4
    buffer_load_ushort v24, v3, s[24:27], 0 offen
    buffer_load_ushort v25, v3, s[24:27], 0 offen offset:512
    buffer_load_ushort v26, v4, s[24:27], 0 offen
    buffer_load_ushort v27, v4, s[24:27], 0 offen offset:512
    buffer_load_ushort v28, v3, s[28:31], 0 offen
    buffer_load_ushort v29, v3, s[28:31], 0 offen offset:512
    buffer_load_ushort v30, v4, s[28:31], 0 offen
    buffer_load_ushort v31, v4, s[28:31], 0 offen offset:512""")
    for i in range(8): A(f"v_lshlrev_b32 v{24+i}, 16, v{24+i}")
    A(f"""v_add_f32 v24, v24, v26
    v_add_f32 v25, v25, v27
    v_sub_f32 v28, v28, v30
    v_sub_f32 v29, v29, v31
    v_add_f32 v26, v24, v25
    v_add_f32 v27, v28, v29
    v_sub_f32 v30, v24, v25
    v_sub_f32 v31, v28, v29
    v_mul_f32 v26, 0.25, v26
    v_mul_f32 v27, 0.25, v27
    v_mul_f32 v30, 0.25, v30
    v_mul_f32 v31, 0.25, v31
    v_cvt_pk_bf16_f32 v26, v26, v27
    v_cvt_pk_bf16_f32 v30, v30, v31
    v_lshlrev_b32 v2, 2, v2
    v_lshl_add_u32 v2, v1, 4, v2
    buffer_store_dword v26, v2, s[20:23], s38 offen
    s_lshr_b32 s38, s34, 2
    s_lshl_b32 s38, s38, 10
    s_lshl_b32 s42, s33, 6
    s_add_u32 s38, s38, s42
    s_add_u32 s38, s38, s39
    s_add_u32 s38, s38, {WS_VP}
    buffer_store_dword v30, v2, s[20:23], s38 offen""".replace("0.25", fhex(0.25)))
    epilogue(A, n, 0)
    A.raw(kernel_desc(n, 64, 64))

XS = 1040
def load_x_lds(A, sx, s_s2, s_w, vl16, st):
    A(f"s_lshl_b32 {s(st)}, {s(s_w)}, 19\ns_lshl_b32 {s(st+1)}, {s(s_s2)}, 10\ns_add_u32 {s(st)}, {s(st)}, {s(st+1)}\ns_mul_i32 {s(st+1)}, {s(s_w)}, {8*XS}")
    for i in range(8):
        A(f"s_mov_b32 m0, {s(st+1)}\nbuffer_load_dwordx4 {v(vl16)}, {s(sx,4)}, {s(st)} offen lds")
        if i < 7: A(f"s_add_u32 {s(st)}, {s(st)}, 65536\ns_add_u32 {s(st+1)}, {s(st+1)}, {XS}")

def read_x_unpack(A, X, P, vaddr):
    for j in range(4):
        for r in range(4):
            A(f"ds_read_b64 {v(P+2*(4*j+r),2)}, {v(vaddr)} offset:{(8*j+r)*32}")
    for j in range(4):
        for r in range(4):
            for hf in range(2):
                unpack(A, X + 16 * (2 * hf) + 4 * j + r, X + 16 * (2 * hf + 1) + 4 * j + r, P + 2 * (4 * j + r) + hf)

def ids(A):
    A("""v_lshrrev_b32 v1, 6, v0
    v_and_b32 v0, 63, v0
    v_readfirstlane_b32 s3, v1
    v_lshlrev_b32 v2, 4, v0
    v_and_b32 v3, 31, v0
    v_lshrrev_b32 v4, 5, v0
    v_and_b32 v5, 15, v0
    v_lshrrev_b32 v6, 4, v0""")

def modulate(A, X, vR, vMR, vpa, poff, PT, H, after_tile):
    for aa in range(4):
        for j in range(4):
            T = PT + 8 * (j & 1)
            A(f"ds_read_b128 {v(T,4)}, {v(vpa)} offset:{poff+(aa*4+j)*32}\nds_read_b128 {v(T+4,4)}, {v(vpa)} offset:{poff+512+(aa*4+j)*32}")
            x = X + 16 * aa + 4 * j
            T2 = PT + 16
            for hp in range(2):
                A(f"v_pk_fma_f32 {v(T2+2*hp,2)}, {v(x+2*hp,2)}, {v(vR,2)}, {v(vR,2)} op_sel:[0,0,1] op_sel_hi:[1,0,1]")
            for hp in range(2):
                A(f"v_pk_fma_f32 {v(T2+2*hp,2)}, {v(T2+2*hp,2)}, {v(T+4+2*hp,2)}, {v(T+2*hp,2)}")
            for hp in range(2):
                A(f"v_cvt_pk_bf16_f32 {v(H(aa)+2*j+hp)}, {v(T2+2*hp)}, {v(T2+2*hp+1)}")
        after_tile(aa)

def k1(A):
    n = "k1_kernel"
    L_X, L_P, L_ST, L_V = 0, 33280, 37376, 40960
    prologue(A, n, 256)
    A("s_load_dwordx2 s[4:5], s[0:1], 0\ns_load_dwordx2 s[6:7], s[0:1], 88")
    ids(A)
    A("s_and_b32 s20, s2, 3\ns_lshr_b32 s21, s2, 2")
    tables_ptr(A, 16, "k1")
    A("s_waitcnt lgkmcnt(0)")
    srd(A, 8, 4, 0x200000); srd(A, 12, 6, 0x10000000)
    load_x_lds(A, 8, 21, 3, 2, 22)
    A(f"""v_lshlrev_b32 v7, 4, v3
    v_lshl_add_u32 v7, v4, 11, v7
    s_lshl_b32 s22, s3, 9
    s_lshl_b32 s23, s3, 10
    s_add_u32 s23, s23, {L_P}
    s_mov_b32 m0, s23
    buffer_load_dwordx4 v7, s[12:15], s22 offen lds
    s_or_b32 s24, s20, s3
    s_cmp_eq_u32 s24, 0
    s_cselect_b32 s25, 0, 2048
    v_add_u32 v8, s25, v2""")
    F1 = 200
    A(f"global_load_dwordx4 {v(F1,4)}, v8, s[16:17] offset:{TAB_F1}\nglobal_load_dwordx4 {v(F1+4,4)}, v8, s[16:17] offset:{TAB_F1+1024}")
    F2 = 128; G = 160; T = 176
    A(f"""v_lshrrev_b32 v9, 3, v3
    s_lshl_b32 s26, s3, 2
    v_add_u32 v9, s26, v9
    v_bfe_u32 v10, v3, 1, 2
    s_lshl_b32 s26, s20, 2
    v_add_u32 v10, s26, v10
    v_and_b32 v11, 1, v3
    v_mul_u32_u24 v12, v9, v10
    v_lshl_add_u32 v12, v11, 7, v12
    v_lshlrev_b32 v13, 4, v10
    v_lshlrev_b32 v14, 1, v10
    v_or_b32 v14, v14, v11
    v_cmp_eq_u32 vcc, 1, v14
    v_cndmask_b32 v12, v12, 0, vcc
    v_mov_b32 v14, 256
    v_cndmask_b32 v13, v13, v14, vcc
    v_lshlrev_b32 v14, 2, v4
    v_mad_u32_u24 v12, v13, v14, v12
    v_cvt_f32_u32 v12, v12
    v_cvt_f32_u32 v13, v13
    v_mul_f32 v12, {fhex(1/512)}, v12
    v_mul_f32 v13, {fhex(1/512)}, v13""")
    for t in range(2):
        for jj in range(2):
            for r in range(4):
                k = 16 * t + 8 * jj + r
                A(f"v_fmamk_f32 {v(T+r)}, v13, {fhex(k)}, v12" if k else f"v_mov_b32 {v(T+r)}, v12")
            for r in range(4): A(f"v_cos_f32 {v(T+r)}, {v(T+r)}")
            for rp in range(2): A(f"v_cvt_pk_bf16_f32 {v(G+4*t+2*jj+rp)}, {v(T+2*rp)}, {v(T+2*rp+1)}")
    for aa in range(4):
        A(f"s_mov_b32 s26, {hex(0xFF << (8*aa))}\ns_mov_b32 s27, s26")
        for i in range(8): A(f"v_cndmask_b32 {v(F2+8*aa+i)}, 0, {v(G+i)}, s[26:27]")
    FA = 208
    A(f"""v_lshlrev_b32 v9, 8, v6
    v_add_u32 v9, s21, v9
    v_cvt_f32_u32 v9, v9
    v_mul_f32 v9, {fhex(1/2048)}, v9""")
    for nh in range(2):
        A(f"v_add_u32 v10, {16*nh}, v5\nv_cvt_f32_u32 v10, v10\nv_mul_f32 v11, v10, v9\nv_mul_f32 v12, {fhex(1/32)}, v10")
        ks = [16 * t + r for t in range(2) for r in range(4)]
        gen_cs_frags(A, 11, 12, ks, [FA + 8 * nh + i for i in range(8)], [FA + 16 + 8 * nh + i for i in range(8)], T, -1)
    X, P = 16, 80
    A(f"""v_mul_u32_u24 v9, {XS}, v3
    v_lshl_add_u32 v9, v4, 7, v9
    s_lshl_b32 s26, s3, 3
    v_add_u32 v9, s26, v9
    v_mul_u32_u24 v10, 80, v3
    v_lshl_add_u32 v11, v4, 3, v10
    s_lshl_b32 s26, s3, 4
    v_add_u32 v11, s26, v11
    v_lshlrev_b32 v12, 4, v4
    v_add_u32 v12, s23, v12
    s_waitcnt vmcnt(0)
    s_barrier""")
    stamp(A, 1)
    read_x_unpack(A, X, P, 9)
    row_stats(A, X, 112, L_ST, 11, 10, 14, 15)
    stamp(A, 2)
    ACC = 160; H = 80
    def after(aa):
        for t in range(2):
            mfma32(A, v(ACC, 16), v(F2 + 8 * aa + 4 * t, 4), v(H + 8 * aa + 4 * t, 4), "0" if aa == 0 and t == 0 else None)
    modulate(A, X, 14, 15, 12, 0, 176, lambda aa: H + 8 * aa, after)
    A(f"""v_lshlrev_b32 v9, 12, v4
    v_lshl_add_u32 v9, v3, 4, v9
    s_lshl_b32 s26, s3, 9
    v_add_u32 v9, s26, v9
    v_lshlrev_b32 v10, 9, v6
    v_lshl_add_u32 v10, v5, 4, v10
    s_lshl_b32 s26, s3, 11
    v_add_u32 v10, s26, v10""")
    for u in range(2):
        for j in range(4): A(f"v_cvt_pk_bf16_f32 {v(16+4*u+j)}, {v(ACC+4*j+2*u)}, {v(ACC+4*j+2*u+1)}")
        A(f"ds_write_b128 v9, {v(16+4*u,4)} offset:{L_V+2048*u}")
    A("s_waitcnt lgkmcnt(0)\ns_barrier")
    for hf in range(2): A(f"ds_read_b128 {v(24+4*hf,4)}, v10 offset:{L_V+256*hf}")
    for hf in range(2):
        for c in range(2): mfma16(A, v(32 + 8 * hf + 4 * c, 4), v(24 + 4 * hf, 4), v(F1 + 4 * c, 4), "0")
    for hf in range(2):
        for r in range(4): A(f"v_cvt_pk_bf16_f32 {v(48+4*hf+r)}, {v(32+8*hf+r)}, {v(36+8*hf+r)}")
    def fa(src, acc, dst):
        for nh in range(2):
            for c in range(2):
                for t in range(2): mfma16(A, v(acc + 8 * nh + 4 * c, 4), v(FA + 16 * c + 8 * nh + 4 * t, 4), v(src + 4 * t, 4), "0" if t == 0 else None)
        for nh in range(2):
            for r in range(4): A(f"v_cvt_pk_bf16_f32 {v(dst+4*nh+r)}, {v(acc+8*nh+r)}, {v(acc+8*nh+4+r)}")
    A(f"""v_lshlrev_b32 v9, 12, v6
    v_lshl_add_u32 v9, v5, 4, v9
    s_lshl_b32 s26, s21, 15
    s_lshl_b32 s27, s20, 10
    s_add_u32 s26, s26, s27
    s_lshl_b32 s27, s3, 8
    s_add_u32 s26, s26, s27
    s_add_u32 s26, s26, {WS_X1}
    s_add_u32 s27, s26, 16384""")
    fa(48, 56, 72)
    stamp(A, 3)
    A("buffer_store_dwordx4 v[72:75], v9, s[12:15], s26 offen\nbuffer_store_dwordx4 v[76:79], v9, s[12:15], s27 offen")
    A("s_cmp_lg_u32 s24, 0\ns_cbranch_scc1 L_end_k1_kernel")
    A.begin_cond()
    for i in range(8): A(f"v_xor_b32 {v(48+i)}, 0x80000000, {v(48+i)}")
    A(f"""v_lshlrev_b32 v9, 4, v6
    v_mov_b32 v10, {OOB}
    v_cmp_eq_u32 vcc, 0, v5
    v_cndmask_b32 v9, v10, v9, vcc
    s_lshl_b32 s26, s21, 7
    s_add_u32 s26, s26, {WS_SIDE}""")
    fa(48, 80, 96)
    A("buffer_store_dwordx4 v[96:99], v9, s[12:15], s26 offen\nbuffer_store_dwordx4 v[100:103], v9, s[12:15], s26 offen offset:64")
    A.end_cond()
    epilogue(A, n, 1)
    A.raw(kernel_desc(n, 256, 256))
    return 49152

def k2(A):
    n = "k2_kernel"
    prologue(A, n, 256)
    A("s_load_dwordx2 s[6:7], s[0:1], 88")
    ids(A)
    A("""s_and_b32 s20, s2, 7
    s_lshr_b32 s21, s2, 3
    s_and_b32 s22, s3, 1
    s_lshr_b32 s23, s3, 1
    s_waitcnt lgkmcnt(0)""")
    srd(A, 12, 6, 0x10000000)
    D, DS, WR, VR, M, ACC, ACS = 16, 32, 48, 56, 64, 128, 144
    A(f"""v_lshlrev_b32 v7, 17, v6
    v_lshl_add_u32 v7, v5, 2, v7
    s_lshl_b32 s24, s20, 12
    s_lshl_b32 s25, s21, 7
    s_add_u32 s24, s24, s25
    s_lshl_b32 s25, s23, 6
    s_add_u32 s24, s24, s25
    s_add_u32 s28, s24, {WS_Z}
    s_add_u32 s24, s24, {WS_X1}
    s_lshl_b32 s25, s22, 20
    s_add_u32 s26, s24, s25
    s_xor_b32 s25, s25, 0x100000
    s_add_u32 s27, s24, s25""")
    for tt in range(4):
        for e in range(4):
            A(f"s_add_u32 s29, {s(26 + (tt >> 1))}, {((tt&1)*16+e)*32768}\nbuffer_load_dword {v(D+4*tt+e)}, v7, s[12:15], s29 offen")
    A(f"""s_lshl_b32 s24, s20, 18
    s_lshl_b32 s25, s21, 13
    s_add_u32 s24, s24, s25
    s_lshl_b32 s25, s23, 12
    s_add_u32 s24, s24, s25
    s_lshl_b32 s25, s22, 11
    s_add_u32 s24, s24, s25
    s_add_u32 s24, s24, {WS_WP}
    buffer_load_dwordx4 {v(WR,4)}, v2, s[12:15], s24 offen
    buffer_load_dwordx4 {v(WR+4,4)}, v2, s[12:15], s24 offen offset:1024
    s_or_b32 s30, s21, s23
    s_cmp_lg_u32 s30, 0
    s_cbranch_scc1 L_k2_nos1""")
    A.begin_cond()
    A(f"""v_lshlrev_b32 v8, 9, v6
    v_lshl_add_u32 v8, v5, 2, v8
    v_lshlrev_b32 v9, 6, v6
    v_lshl_add_u32 v9, v5, 4, v9
    v_mov_b32 v10, {OOB}
    v_cmp_gt_u32 vcc, 4, v5
    v_cndmask_b32 v8, v10, v8, vcc
    v_cndmask_b32 v9, v10, v9, vcc
    s_lshl_b32 s24, s20, 4
    s_add_u32 s24, s24, {WS_SIDE}
    s_lshl_b32 s25, s22, 12
    s_add_u32 s26, s24, s25
    s_xor_b32 s25, s25, 0x1000
    s_add_u32 s27, s24, s25""")
    for tt in range(4):
        for e in range(4):
            A(f"buffer_load_dword {v(DS+4*tt+e)}, v8, s[12:15], {s(26 + (tt >> 1))} offen offset:{((tt&1)*16+e)*128}")
    A(f"""s_lshl_b32 s24, s20, 10
    s_lshl_b32 s25, s22, 9
    s_add_u32 s24, s24, s25
    s_add_u32 s24, s24, {WS_VP}
    buffer_load_dwordx4 {v(VR,4)}, v9, s[12:15], s24 offen
    buffer_load_dwordx4 {v(VR+4,4)}, v9, s[12:15], s24 offen offset:256""")
    A.end_cond()
    A("L_k2_nos1:")
    A(f"""s_lshl_b32 s24, s22, 5
    v_lshl_add_u32 v9, v6, 2, s24
    v_cvt_f32_u32 v9, v9""")
    for b in range(2):
        A(f"v_add_u32 v10, s24, v5\nv_add_u32 v10, {16*b}, v10\nv_cvt_f32_u32 v10, v10\nv_mul_f32 v12, {fhex(1/64)}, v10\nv_mul_f32 v11, v12, v9")
        ks = [16 * t + e for t in range(4) for e in range(4)]
        gen_cs_frags(A, 11, 12, ks, [M + 16 * b + i for i in range(16)], [M + 32 + 16 * b + i for i in range(16)], 160, -1)
    def fwd(src, acc):
        for b in range(2):
            for c in range(2):
                for t in range(4): mfma16(A, v(acc + 8 * b + 4 * c, 4), v(M + 32 * c + 16 * b + 4 * t, 4), v(src + 4 * t, 4), "0" if t == 0 else None)
    WF, Q = 160, 176
    stamp(A, 1)
    fwd(D, ACC)
    stamp(A, 2)
    for i in range(8): unpack(A, WF + 2 * i, WF + 2 * i + 1, WR + i)
    for b in range(2):
        for r in range(4):
            i = 4 * b + r; xr, xi = v(ACC + 8 * b + r), v(ACC + 8 * b + 4 + r)
            A(f"v_mul_f32 {v(Q+2*i)}, {xr}, {v(WF+2*i)}\nv_mul_f32 {v(Q+2*i+1)}, {xr}, {v(WF+2*i+1)}")
            A(f"v_fma_f32 {v(Q+2*i)}, -{xi}, {v(WF+2*i+1)}, {v(Q+2*i)}\nv_fmac_f32 {v(Q+2*i+1)}, {xi}, {v(WF+2*i)}")
    A("s_cmp_lg_u32 s30, 0\ns_cbranch_scc1 L_k2_nos2")
    A.begin_cond()
    fwd(DS, ACS)
    for i in range(8): unpack(A, WF + 2 * i, WF + 2 * i + 1, VR + i)
    for b in range(2):
        for r in range(4):
            i = 4 * b + r; xr, xi = v(ACS + 8 * b + r), v(ACS + 8 * b + 4 + r)
            A(f"v_fmac_f32 {v(Q+2*i)}, {xr}, {v(WF+2*i)}\nv_fmac_f32 {v(Q+2*i+1)}, {xr}, {v(WF+2*i+1)}")
            A(f"v_fma_f32 {v(Q+2*i)}, -{xi}, {v(WF+2*i+1)}, {v(Q+2*i)}\nv_fmac_f32 {v(Q+2*i+1)}, {xi}, {v(WF+2*i)}")
    A.end_cond()
    A("L_k2_nos2:")
    for i in range(8): A(f"v_cvt_pk_bf16_f32 {v(D+i)}, {v(Q+2*i)}, -{v(Q+2*i+1)}")
    A(f"""s_lshl_b32 s24, s3, 11
    v_add_u32 v8, s24, v2
    v_xor_b32 v9, 2048, v8
    ds_write_b128 v8, {v(D,4)}
    ds_write_b128 v8, {v(D+4,4)} offset:1024
    s_waitcnt lgkmcnt(0)
    s_barrier
    ds_read_b128 {v(D+8,4)}, v9
    ds_read_b128 {v(D+12,4)}, v9 offset:1024""")
    for t in range(4):
        for b in range(2):
            for c in range(2): mfma16(A, v(ACC + 8 * b + 4 * c, 4), v(D + 4 * t, 4), v(M + 32 * c + 16 * b + 4 * t, 4), "0" if t == 0 else None)
    A(f"""v_lshlrev_b32 v8, 15, v5
    v_lshl_add_u32 v8, v6, 4, v8
    s_lshl_b32 s24, s22, 20
    s_add_u32 s28, s28, s24
    s_add_u32 s29, s28, {16*32768}""")
    for b in range(2):
        for r in range(4): A(f"v_cvt_pk_bf16_f32 {v(Q+4*b+r)}, {v(ACC+8*b+r)}, -{v(ACC+8*b+4+r)}")
        A(f"buffer_store_dwordx4 {v(Q+4*b,4)}, v8, s[12:15], {s(28+b)} offen")
    epilogue(A, n, 2)
    A.raw(kernel_desc(n, 192, 192))
    return 8192

def mish_tile(A, ACC, T, OUT):
    for i0 in range(0, 16, 4):
        for u in range(4): A(f"v_mul_f32 {v(T+u)}, {fhex(1.4426950408889634)}, {v(ACC+i0+u)}")
        for u in range(4): A(f"v_exp_f32 {v(T+u)}, {v(T+u)}")
        for u in range(4): A(f"v_add_f32 {v(T+u)}, 1.0, {v(T+u)}")
        for u in range(4): A(f"v_fma_f32 {v(T+u)}, {v(T+u)}, {v(T+u)}, 1.0")
        for u in range(4): A(f"v_rcp_f32 {v(T+u)}, {v(T+u)}")
        for u in range(4): A(f"v_mul_f32 {v(T+u)}, {v(ACC+i0+u)}, {v(T+u)}")
        for u in range(4): A(f"v_fma_f32 {v(T+u)}, {v(T+u)}, -2.0, {v(ACC+i0+u)}")
        for u in range(2): A(f"v_cvt_pk_bf16_f32 {v(OUT+i0//2+u)}, {v(T+2*u)}, {v(T+2*u+1)}")

def k3(A):
    n = "k3_kernel"
    L_H, L_X, L_ST, L_R, L_P, L_W = 0, 0, 33280, 35840, 52224, 56320
    prologue(A, n, 256)
    A("s_load_dwordx2 s[4:5], s[0:1], 0\ns_load_dwordx2 s[6:7], s[0:1], 88\ns_load_dwordx2 s[18:19], s[0:1], 40")
    ids(A)
    A("s_and_b32 s20, s2, 3\ns_lshr_b32 s21, s2, 2")
    tables_ptr(A, 16, "k3")
    A("s_waitcnt lgkmcnt(0)")
    srd(A, 8, 4, 0x200000); srd(A, 12, 6, 0x10000000); srd(A, 32, 6, WP_BYTES, WS_W1P); srd(A, 36, 18, 2752)
    ZF = 16
    A(f"""v_lshlrev_b32 v7, 12, v6
    v_lshl_add_u32 v7, v5, 4, v7
    s_lshl_b32 s26, s21, 15
    s_lshl_b32 s27, s3, 10
    s_add_u32 s26, s26, s27
    s_add_u32 s26, s26, {WS_Z}
    s_add_u32 s27, s26, 16384""")
    for e in range(4):
        for t in range(2): A(f"buffer_load_dwordx4 {v(ZF+8*e+4*t,4)}, v7, s[12:15], {s(26+t)} offen offset:{256*e}")
    load_x_lds(A, 8, 21, 3, 2, 22)
    A(f"""v_lshlrev_b32 v7, 4, v3
    v_lshl_add_u32 v7, v4, 11, v7
    s_lshl_b32 s22, s3, 9
    s_add_u32 s24, s22, {3*2048}
    s_lshl_b32 s23, s3, 10
    s_add_u32 s23, s23, {L_P}
    s_mov_b32 m0, s23
    buffer_load_dwordx4 v7, s[12:15], s24 offen lds
    v_lshlrev_b32 v7, 2, v3
    s_add_u32 s24, s22, {2*2048}""")
    GA = 12
    for aa in range(4): A(f"buffer_load_dword {v(GA+aa)}, v7, s[12:15], s24 offen offset:{128*aa}")
    I1 = 48
    A(f"""s_cmp_eq_u32 s3, 0
    s_cselect_b32 s25, 0, 2048
    v_add_u32 v8, s25, v2
    v_add_u32 v9, {TAB_I1}, v2
    v_add_u32 v8, {TAB_I1}, v8""")
    A(f"global_load_dwordx4 {v(I1,4)}, v8, s[16:17]\nglobal_load_dwordx4 {v(I1+4,4)}, v8, s[16:17] offset:1024")
    A(f"global_load_dwordx4 {v(I1+8,4)}, v9, s[16:17] offset:2048\nglobal_load_dwordx4 {v(I1+12,4)}, v9, s[16:17] offset:3072")
    BI = 208
    A(f"""s_mul_i32 s28, s20, 11
    s_add_u32 s28, s28, s3
    v_lshlrev_b32 v8, 3, v4""")
    for i in range(3):
        A(f"s_add_u32 s29, s28, {4*((i+2)%3)}\ns_lshl_b32 s29, s29, 6")
        for j in range(4): A(f"buffer_load_dwordx2 {v(224+8*i+2*j,2)}, v8, s[36:39], s29 offen offset:{16*j}")
    A(f"s_lshl_b32 s29, s28, 15\ns_add_u32 s30, s29, {8<<15}\ns_lshl_b32 s31, s3, 15\ns_add_u32 s31, s31, {L_W}\ns_cmp_eq_u32 s3, 3\ns_cbranch_scc1 L_k3_now3")
    A.begin_cond()
    for i in range(8):
        A("s_mov_b32 m0, s31")
        for u in range(4): A(f"buffer_load_dwordx4 v2, s[32:35], s30 offen offset:{1024*u} lds")
        A("s_add_u32 s30, s30, 4096\ns_add_u32 s31, s31, 4096")
    A.end_cond()
    A("L_k3_now3:")
    for i in range(2):
        for ks in range(32):
            A(f"buffer_load_dwordx4 {a(128*i+4*ks,4)}, v2, s[32:35], s29 offen offset:{1024*(ks&3)}")
            if ks & 3 == 3: A(f"s_add_u32 s29, s29, {4096 if ks < 31 else 4096 + (3<<15)}")
    SA, T = 64, 192
    for nh in range(2):
        A(f"""v_add_u32 v9, {16*nh}, v5
        v_lshlrev_b32 v9, 6, v9
        v_add_u32 v9, s21, v9
        v_cvt_f32_u32 v9, v9
        v_mul_f32 v10, {fhex(1/2048)}, v9
        v_lshlrev_b32 v9, 2, v6
        v_cvt_f32_u32 v9, v9
        v_mul_f32 v9, v9, v10""")
        ks = [16 * t + e for t in range(2) for e in range(4)]
        gen_cs_frags(A, 9, 10, ks, [SA + 8 * nh + i for i in range(8)], [SA + 16 + 8 * nh + i for i in range(8)], T, +1)
    I2 = 96
    A("s_mov_b32 s40, -1\ns_mov_b32 s41, 0\nv_and_b32 v11, 1, v3\nv_cvt_f32_u32 v11, v11\nv_fma_f32 v11, v11, -2.0, 1.0")
    for aa in range(4):
        A(f"""s_lshl_b32 s24, s3, 2
        s_add_u32 s24, s24, {aa}
        v_lshl_add_u32 v9, v3, 4, s24
        v_cvt_f32_u32 v9, v9
        v_mul_f32 v10, {fhex(1/512)}, v9
        v_lshlrev_b32 v9, 2, v4
        v_cvt_f32_u32 v9, v9
        v_mul_f32 v9, v9, v10""")
        for t in range(2):
            for e in range(4):
                k = 8 * t + e
                A(f"v_fmamk_f32 {v(T+3*e)}, v10, {fhex(k)}, v9" if k else f"v_mov_b32 {v(T+3*e)}, v9")
            for e in range(4): A(f"v_cos_f32 {v(T+3*e+1)}, {v(T+3*e)}\nv_sin_f32 {v(T+3*e+2)}, {v(T+3*e)}")
            if t == 0: A(f"v_cndmask_b32 {v(T+2)}, {v(T+2)}, -v11, s[40:41]")
            for e in range(4): A(f"v_mul_f32 {v(T+3*e+1)}, {v(T+3*e+1)}, {v(GA+aa)}\nv_mul_f32 {v(T+3*e+2)}, {v(T+3*e+2)}, {v(GA+aa)}")
            for e in range(4): A(f"v_cvt_pk_bf16_f32 {v(I2+8*aa+4*t+e)}, {v(T+3*e+1)}, -{v(T+3*e+2)}")
    X, P = 128, 192
    A(f"""v_mul_u32_u24 v9, {XS}, v3
    v_lshl_add_u32 v9, v4, 7, v9
    s_lshl_b32 s26, s3, 3
    v_add_u32 v9, s26, v9
    s_waitcnt vmcnt(63)
    s_barrier""")
    stamp(A, 1)
    read_x_unpack(A, X, P, 9)
    A("s_waitcnt lgkmcnt(0)\ns_barrier")
    stamp(A, 2)
    ACA, Y, AC1, VS = 192, 208, 192, 16
    VS = 248 - 32
    for i in range(3):
        pass
    return_lds = L_W + 98304
    ST = 16
    for e in range(4):
        for nh in range(2):
            for c in range(2):
                for t in range(2): mfma16(A, v(ACA + 8 * nh + 4 * c, 4), v(ZF + 8 * e + 4 * t, 4), v(SA + 16 * c + 8 * nh + 4 * t, 4), "0" if t == 0 else None)
        for nh in range(2):
            for r in range(4): A(f"v_cvt_pk_bf16_f32 {v(Y+4*nh+r)}, {v(ACA+8*nh+r)}, {v(ACA+8*nh+4+r)}")
        mat = I1 if e == 0 else I1 + 8
        for nh in range(2):
            for mt in range(2): mfma16(A, v(AC1 + 8 * nh + 4 * mt, 4), v(mat + 4 * mt, 4), v(Y + 4 * nh, 4), "0")
        for nh in range(2):
            for mt in range(2):
                for u in range(2):
                    A(f"v_cvt_pk_bf16_f32 {v(216+0)}, {v(AC1+8*nh+4*mt+2*u)}, {v(AC1+8*nh+4*mt+2*u+1)}".replace(v(216), v(216 + (4*nh+2*mt+u))))
        if e == 0:
            A(f"""v_lshlrev_b32 v9, 12, v6
            v_lshl_add_u32 v9, v5, 4, v9
            s_lshl_b32 s26, s3, 9
            v_add_u32 v9, s26, v9""")
        for nh in range(2):
            for mt in range(2):
                for u in range(2):
                    A(f"ds_write_b32 v9, {v(216+4*nh+2*mt+u)} offset:{L_H+(8*mt+u)*2048+nh*256+4*e}")
    A(f"""v_lshlrev_b32 v10, 9, v4
    v_lshl_add_u32 v10, v3, 4, v10
    s_lshl_b32 s26, s3, 13
    v_add_u32 v10, s26, v10
    s_waitcnt lgkmcnt(0)
    s_barrier""")
    BF = 16
    stamp(A, 3)
    for aa in range(4):
        for t in range(2): A(f"ds_read_b128 {v(BF+8*aa+4*t,4)}, v10 offset:{L_H+aa*2048+t*1024}")
    for aa in range(4):
        for t in range(2): mfma32(A, v(X + 16 * aa, 16), v(I2 + 8 * aa + 4 * t, 4), v(BF + 8 * aa + 4 * t, 4))
    A(f"""v_mul_u32_u24 v10, 80, v3
    v_lshl_add_u32 v11, v4, 3, v10
    s_lshl_b32 s26, s3, 4
    v_add_u32 v11, s26, v11
    v_lshlrev_b32 v12, 4, v4
    v_add_u32 v12, s23, v12""")
    row_stats(A, X, 48, L_ST, 11, 10, 14, 15)
    A(f"""v_lshlrev_b32 v9, 13, v4
    v_lshl_add_u32 v9, v3, 4, v9
    s_lshr_b32 s26, s3, 1
    s_lshl_b32 s26, s26, 10
    s_and_b32 s27, s3, 1
    s_lshl_b32 s27, s27, 9
    s_add_u32 s26, s26, s27
    v_add_u32 v9, s26, v9""")
    for qq in range(4):
        A(f"s_cmp_lg_u32 s20, {qq}\ns_cbranch_scc1 L_k3_x{qq}")
        A.begin_cond()
        for r in range(4):
            for aa in range(4):
                A(f"ds_write_b32 v9, {v(X+16*aa+4*qq+r)} offset:{L_R+(r>>1)*4096+(r&1)*2048+4*aa}")
        A.end_cond()
        A(f"L_k3_x{qq}:")
    A(f"s_lshl_b32 s26, s3, 13\nv_add_u32 v9, s26, v2")
    H = 64
    def after(aa):
        for t in range(2): A(f"ds_write_b128 v9, {v(H+8*aa+4*t,4)} offset:{L_H+aa*2048+t*1024}")
    modulate(A, X, 14, 15, 12, 0, 16, lambda aa: H + 8 * aa, after)
    stamp(A, 4)
    AC = [16, 32, 48]
    for i in range(3):
        for j in range(4):
            for hp in range(2): unpack(A, AC[i] + 4 * j + 2 * hp, AC[i] + 4 * j + 2 * hp + 1, 224 + 8 * i + 2 * j + hp)
    A(f"""s_lshl_b32 s26, s3, 12
    v_add_u32 v10, s26, v2
    s_lshl_b32 s26, s3, 15
    s_add_u32 s26, s26, {L_W}
    v_add_u32 v11, s26, v2
    s_waitcnt vmcnt(0) lgkmcnt(0)
    s_barrier""")
    stamp(A, 5)
    for j in range(4): A(f"ds_read_b128 {v(192+4*j,4)}, v10 offset:{L_R+1024*j}")
    A(f"""s_lshl_b32 s26, s2, 14
    s_add_u32 s26, s26, {WS_X1R}""")
    for j in range(4): A(f"buffer_store_dwordx4 {v(192+4*j,4)}, v10, s[12:15], s26 offen offset:{1024*j}")
    A(f"""s_mul_i32 s26, s21, {88*1024}
    s_lshl_b32 s27, s28, 11
    s_add_u32 s26, s26, s27
    s_add_u32 s26, s26, {WS_ACT}""")
    B0, A0, MT, OUT = 64, 96, 128, 136
    def tile(i):
        for ks in range(32):
            for k2 in ([0, 1, 2, 3] if ks == 0 else [ks + 3] if ks + 3 < 32 else []):
                A(f"ds_read_b128 {v(B0+4*(k2&7),4)}, v2 offset:{L_H+1024*k2}")
                if i == 0: A(f"ds_read_b128 {v(A0+4*(k2&7),4)}, v11 offset:{1024*k2}")
            aop = v(A0 + 4 * (ks & 7), 4) if i == 0 else a(128 * (i - 1) + 4 * ks, 4)
            mfma32(A, v(AC[i], 16), aop, v(B0 + 4 * (ks & 7), 4))
        mish_tile(A, AC[i], MT, OUT)
        A(f"s_add_u32 s27, s26, {2048*4*((i+2)%3)}")
        for t in range(2): A(f"buffer_store_dwordx4 {v(OUT+4*t,4)}, v2, s[12:15], s27 offen offset:{1024*t}")
    A("s_cmp_eq_u32 s3, 3\ns_cbranch_scc1 L_k3_t1")
    A.begin_cond(); tile(0); A.end_cond()
    A("L_k3_t1:")
    tile(1); tile(2)
    epilogue(A, n, 3)
    A.raw(kernel_desc(n, 512, 256))
    return return_lds

def k4(A):
    n = "k4_kernel"
    prologue(A, n, 256)
    A("s_load_dwordx2 s[4:5], s[0:1], 72\ns_load_dwordx2 s[6:7], s[0:1], 88")
    ids(A)
    A("s_and_b32 s20, s2, 3\ns_lshr_b32 s21, s2, 2\ns_waitcnt lgkmcnt(0)")
    srd(A, 8, 4, 0x200000); srd(A, 12, 6, 0x10000000); srd(A, 32, 6, WP_BYTES, WS_W2P)
    A(f"""s_mul_i32 s26, s21, {88*1024}
    s_mul_i32 s27, s3, {22*1024}
    s_add_u32 s26, s26, s27
    s_add_u32 s26, s26, {WS_ACT}""")
    for i in range(22):
        if i % 4 == 0: A("s_mov_b32 m0, s27")
        A(f"buffer_load_dwordx4 v2, s[12:15], s26 offen offset:{1024*(i%4)} lds")
        if i % 4 == 3: A("s_add_u32 s26, s26, 4096\ns_add_u32 s27, s27, 4096")
    A(f"""s_lshl_b32 s26, s3, 12
    v_add_u32 v10, s26, v2
    s_lshl_b32 s26, s2, 14
    s_add_u32 s26, s26, {WS_X1R}""")
    XR, GB, AC, B0, W0 = 16, 32, 48, 64, 96
    for j in range(4): A(f"buffer_load_dwordx4 {v(XR+4*j,4)}, v10, s[12:15], s26 offen offset:{1024*j}")
    A(f"""s_lshl_b32 s26, s20, 2
    s_add_u32 s26, s26, s3
    s_lshl_b32 s27, s26, 7
    s_add_u32 s27, s27, {5*2048}
    v_lshlrev_b32 v10, 4, v4""")
    for j in range(4): A(f"buffer_load_dwordx4 {v(GB+4*j,4)}, v10, s[12:15], s27 offen offset:{32*j}")
    A("s_lshl_b32 s27, s26, 10")
    wreg = lambda i: a(4 * i, 4) if i < 64 else v(W0 + 4 * (i - 64), 4)
    for i in range(88):
        A(f"buffer_load_dwordx4 {wreg(i)}, v2, s[32:35], s27 offen\ns_add_u32 s27, s27, 16384")
        if i == 50: A("s_waitcnt vmcnt(59)\ns_barrier")
    stamp(A, 1)
    for ks in range(88):
        if ks == 1: stamp(A, 2)
        for k2 in ([0, 1, 2, 3] if ks == 0 else [ks + 3] if ks + 3 < 88 else []):
            if k2 < 64: A(f"ds_read_b128 {v(B0+4*(k2&7),4)}, v2 offset:{1024*k2}")
            else:
                if k2 == 64: A("v_add_u32 v11, 0x10000, v2")
                A(f"ds_read_b128 {v(B0+4*(k2&7),4)}, v11 offset:{1024*(k2-64)}")
        mfma32(A, v(AC, 16), wreg(ks), v(B0 + 4 * (ks & 7), 4), "0" if ks == 0 else None)
    A(f"""v_lshlrev_b32 v10, 16, v3
    v_lshl_add_u32 v10, v4, 4, v10
    s_lshl_b32 s27, s21, 10
    s_lshl_b32 s26, s26, 6
    s_add_u32 s27, s27, s26""")
    for i in range(0, 16, 2): A(f"v_pk_fma_f32 {v(AC+i,2)}, {v(AC+i,2)}, {v(GB+i,2)}, {v(XR+i,2)}")
    for i in range(8): A(f"v_cvt_pk_bf16_f32 {v(B0+i)}, {v(AC+2*i)}, {v(AC+2*i+1)}")
    for jp in range(2):
        for x in range(2): A(f"v_permlane32_swap_b32 {v(B0+4*jp+x)}, {v(B0+4*jp+2+x)}")
        A(f"buffer_store_dwordx4 {v(B0+4*jp,4)}, v10, s[8:11], s27 offen offset:{32*jp}")
    epilogue(A, n, 4)
    A.raw(kernel_desc(n, 512, 256))
    return 88 * 1024

def build(fn):
    A = Asm()
    k0(A); l1 = k1(A); l2 = k2(A); l3 = k3(A); l4 = k4(A)
    hdr = [f"; @launch kernel=k0_kernel grid=(524,1,1) block=(256,1,1) lds=2048",
           f"; @launch kernel=k1_kernel grid=(256,1,1) block=(256,1,1) lds={l1}",
           f"; @launch kernel=k2_kernel grid=(256,1,1) block=(256,1,1) lds={l2}",
           f"; @launch kernel=k3_kernel grid=(256,1,1) block=(256,1,1) lds={l3}",
           f"; @launch kernel=k4_kernel grid=(256,1,1) block=(256,1,1) lds={l4}",
           '.amdgcn_target "amdgcn-amd-amdhsa--gfx950"', ".text"]
    open(fn, "w").write("\n".join(hdr) + "\n" + A.finalize() + "\n" + emit_tables() + "\n")

if __name__ == "__main__":
    build("v1.s")
    common.PROF = True
    build("v1p.s")
```

```python
import sys
sys.path.insert(0, "gen")
from common import *
def spin_variant(src, dst, terms, base_us=100, amp=10):
    s = open(src).read()
    lines = s.split('\n')
    hdr = [l for l in lines if l.startswith('; @launch')]
    body = '\n'.join(l for l in lines if not l.startswith('; @launch'))
    code = ["s_cmp_ge_u32 s2, 1", "s_cbranch_scc1 L_sp_end", "s_load_dwordx2 s[4:5], s[0:1], 88", "s_waitcnt lgkmcnt(0)",
            "s_mov_b32 s6, 0x10000000", "s_mov_b32 s7, 0x20000", "v_lshlrev_b32 v1, 7, v0",
            f"s_mov_b32 s8, {WS_PROF}", "v_mov_b32 v9, 0", "buffer_load_dword v2, v9, s[4:7], s8 offen", "s_waitcnt vmcnt(0)",
            "v_readfirstlane_b32 s10, v2", f"s_mov_b32 s11, {base_us*100}"]
    for (sign, k, i) in terms:
        code += [f"s_mov_b32 s8, {WS_PROF + k*0x20000 + 4*i}", "v_mov_b32 v4, 0"]
        for q in range(4):
            code += [f"buffer_load_dword v3, v1, s[4:7], s8 offen", "s_waitcnt vmcnt(0)", "v_subrev_u32 v3, s10, v3", "v_max_i32 v4, v4, v3", "s_add_u32 s8, s8, 8192"]
        code += ["s_mov_b32 s13, 0"]
        for l in range(64):
            code += [f"v_readlane_b32 s12, v4, {l}", "s_nop 1", "s_max_i32 s13, s13, s12"]
        code += [f"s_mul_i32 s13, s13, {amp*sign}", "s_add_u32 s11, s11, s13"]
    code += ["s_mov_b32 s14, 0", "L_sp_loop:", "s_memrealtime s[16:17]", "s_waitcnt lgkmcnt(0)", "s_sub_u32 s16, s16, s10", "s_add_u32 s14, s14, 1",
             "s_cmp_ge_u32 s14, 100000", "s_cbranch_scc1 L_sp_end", "s_cmp_lt_i32 s16, s11", "s_cbranch_scc1 L_sp_loop", "L_sp_end:", "s_endpgm"]
    k = ".globl sp_kernel\n.p2align 8\n.type sp_kernel,@function\nsp_kernel:\n" + "\n".join(code) + "\n" + kernel_desc("sp_kernel", 16, 16, 32)
    body = body.replace('.p2align 8\n.type L_tables', k + '.p2align 8\n.type L_tables')
    open(dst, 'w').write('\n'.join(hdr + ['; @launch kernel=sp_kernel grid=(1,1,1) block=(64,1,1) lds=0']) + '\n' + body)
if __name__ == "__main__":
    spin_variant('v1p.s', 'sp0.s', [])
    spin_variant('v1p.s', 'sp1.s', [(1, 0, 7)])
    spin_variant('v1p.s', 'sp2.s', [(1, 1, 7)])
    spin_variant('v1p.s', 'sp3.s', [(1, 2, 7)])
    spin_variant('v1p.s', 'sp4.s', [(1, 3, 7)])
    spin_variant('v1p.s', 'sp5.s', [(1, 4, 7)])
```

```python
import numpy as np, struct
from asmlib import *
import model

NAME = "adaLN_cond__spectral_gfnet__dense_activation_mish__prompt"
WS_MODP = 0x0
WS_X1 = 0x100000
WS_SIDE = 0x380000
WS_Z = 0x400000
WS_WP = 0x700000
WS_VP = 0x900000
WS_W1P = 0xA00000
WS_W2P = 0xC00000
WS_ACT = 0x1000000
WS_X1R = 0x1800000
WP_BYTES = 43 * 32 * 1024
OOB = 0x7FFFFF00

def fhex(x): return "0x%08x" % struct.unpack("<I", struct.pack("<f", float(x)))[0]
def bfbits(x): return (model.bf(np.asarray(x, np.float32)).view(np.uint32) >> 16).astype(np.uint32)

def table_F1():
    F1 = model.mat_F1(); T = np.zeros((2, 2, 64, 4), np.uint32)
    for vv in range(2):
        for c in range(2):
            for l in range(64):
                m, g = l & 15, l >> 4
                for i in range(4):
                    d1 = 4 * g + i
                    T[vv, c, l, i] = bfbits(F1[vv, d1, 0, m, c]) | (bfbits(F1[vv, d1, 1, m, c]) << 16)
    return T
def table_I1():
    I1 = model.mat_I1() * model.WSCALE; T = np.zeros((2, 2, 64, 4), np.uint32)
    for vv in range(2):
        for mt in range(2):
            for l in range(64):
                rho, g = l & 15, l >> 4
                d1, c = 8 * mt + (rho >> 1), rho & 1
                for r in range(4):
                    m = 4 * g + r
                    T[vv, mt, l, r] = bfbits(I1[vv, m, 0, d1, c]) | (bfbits(I1[vv, m, 1, d1, c]) << 16)
    return T
def emit_tables():
    t = np.concatenate([table_F1().ravel(), table_I1().ravel()])
    lines = [".p2align 8", ".type L_tables,@object", "L_tables:"]
    for i in range(0, len(t), 8):
        lines.append(".long " + ",".join("0x%08x" % x for x in t[i:i + 8]))
    lines.append(f".size L_tables, {4*len(t)}")
    return "\n".join(lines)
TAB_F1, TAB_I1 = 0, 4096

def srd(A, d, base, nbytes, off=0):
    if off:
        A(f"s_add_u32 {s(d)}, {s(base)}, {hex(off)}\ns_addc_u32 {s(d+1)}, {s(base+1)}, 0")
    else:
        A(f"s_mov_b32 {s(d)}, {s(base)}\ns_mov_b32 {s(d+1)}, {s(base+1)}")
    A(f"s_mov_b32 {s(d+2)}, {hex(nbytes)}\ns_mov_b32 {s(d+3)}, 0x20000")

def tables_ptr(A, d, tag):
    A(f"s_getpc_b64 {s(d,2)}")
    A(f"L_pc_{tag}:")
    A(f"s_add_u32 {s(d)}, {s(d)}, L_tables-L_pc_{tag}\ns_addc_u32 {s(d+1)}, {s(d+1)}, 0")

PROF = False
WS_PROF = 0x2000000
def stamp(A, i):
    if PROF: A.raw(f"    s_memrealtime s[{80+2*i}:{81+2*i}]")

def prologue(A, name, nwg):
    A.raw(f".globl {name}\n.p2align 8\n.type {name},@function\n{name}:")
    A.reset_state()
    if PROF:
        for i in range(1, 11): A.raw(f"    s_mov_b32 s{80+2*i}, 0")
    stamp(A, 0)
    A(f"s_cmp_ge_u32 s2, {nwg}\ns_cbranch_scc1 L_exit_{name}")

def epilogue(A, name, kidx=0):
    A(f"L_end_{name}:")
    if PROF:
        A.raw("    s_waitcnt vmcnt(0)")
        stamp(A, 10)
        t = f"""s_mov_b64 exec, -1
        s_load_dwordx2 s[76:77], s[0:1], 88
        v_mbcnt_lo_u32_b32 v1, -1, 0
        v_mbcnt_hi_u32_b32 v1, -1, v1
        s_waitcnt lgkmcnt(0)
        s_mov_b32 s78, 0x10000000
        s_mov_b32 s79, 0x20000
        s_lshl_b32 s75, s2, 8
        s_lshl_b32 s74, s3, 6
        s_add_u32 s75, s75, s74
        s_add_u32 s75, s75, {WS_PROF + kidx * 0x40000}
        v_mov_b32 v2, 0
        """ + "\n".join(f"v_mov_b32 v{4+i}, s{80+2*i}" for i in range(11)) + """
        v_cmp_eq_u32 vcc, 0, v1
        s_nop 1
        s_and_b64 exec, exec, vcc
        buffer_store_dwordx4 v[4:7], v2, s[76:79], s75 offen
        buffer_store_dwordx4 v[8:11], v2, s[76:79], s75 offen offset:16
        buffer_store_dwordx4 v[12:15], v2, s[76:79], s75 offen offset:32"""
        A.raw("\n".join("    " + x.strip() for x in t.split("\n")))
    A(f"L_exit_{name}:\ns_endpgm")

def unpack(A, lo, hi, src):
    A(f"v_lshlrev_b32 {v(lo)}, 16, {v(src)}\nv_and_b32 {v(hi)}, 0xffff0000, {v(src)}")

def gen_cs_frags(A, al, be, ks, dst_re, dst_im, tmp, sign):
    n = len(ks)
    for i0 in range(0, n, 4):
        idx = list(range(i0, min(n, i0 + 4)))
        for u, i in enumerate(idx):
            if ks[i] == 0: A(f"v_mov_b32 {v(tmp+3*u)}, {v(al)}")
            else: A(f"v_fmamk_f32 {v(tmp+3*u)}, {v(be)}, {fhex(ks[i])}, {v(al)}")
        for u, i in enumerate(idx):
            A(f"v_cos_f32 {v(tmp+3*u+1)}, {v(tmp+3*u)}\nv_sin_f32 {v(tmp+3*u+2)}, {v(tmp+3*u)}")
        for u, i in enumerate(idx):
            c, sn = v(tmp + 3 * u + 1), v(tmp + 3 * u + 2)
            if sign < 0:
                A(f"v_cvt_pk_bf16_f32 {v(dst_re[i])}, {c}, {sn}\nv_cvt_pk_bf16_f32 {v(dst_im[i])}, -{sn}, {c}")
            else:
                A(f"v_cvt_pk_bf16_f32 {v(dst_re[i])}, {c}, -{sn}\nv_cvt_pk_bf16_f32 {v(dst_im[i])}, {sn}, {c}")

def mfma32(A, d, x, y, c=None):
    A(f"v_mfma_f32_32x32x16_bf16 {d}, {x}, {y}, {c if c is not None else d}")
def mfma16(A, d, x, y, c=None):
    A(f"v_mfma_f32_16x16x32_bf16 {d}, {x}, {y}, {c if c is not None else d}")

def row_stats(A, X, T, lds_base, v_addr_w, v_addr_r, v_r, v_mr):
    A(f"v_pk_add_f32 {v(T,2)}, {v(X,2)}, {v(X+2,2)}\nv_pk_mul_f32 {v(T+2,2)}, {v(X,2)}, {v(X,2)}")
    A(f"v_pk_add_f32 {v(T+4,2)}, {v(X+4,2)}, {v(X+6,2)}\nv_pk_mul_f32 {v(T+6,2)}, {v(X+2,2)}, {v(X+2,2)}")
    A(f"v_pk_fma_f32 {v(T+2,2)}, {v(X+4,2)}, {v(X+4,2)}, {v(T+2,2)}\nv_pk_fma_f32 {v(T+6,2)}, {v(X+6,2)}, {v(X+6,2)}, {v(T+6,2)}")
    for i in range(8, 64, 4):
        A(f"v_pk_add_f32 {v(T,2)}, {v(T,2)}, {v(X+i,2)}\nv_pk_fma_f32 {v(T+2,2)}, {v(X+i,2)}, {v(X+i,2)}, {v(T+2,2)}")
        A(f"v_pk_add_f32 {v(T+4,2)}, {v(T+4,2)}, {v(X+i+2,2)}\nv_pk_fma_f32 {v(T+6,2)}, {v(X+i+2,2)}, {v(X+i+2,2)}, {v(T+6,2)}")
    A(f"v_pk_add_f32 {v(T,2)}, {v(T,2)}, {v(T+4,2)}\nv_pk_add_f32 {v(T+2,2)}, {v(T+2,2)}, {v(T+6,2)}")
    A(f"v_add_f32 {v(T)}, {v(T)}, {v(T+1)}\nv_add_f32 {v(T+1)}, {v(T+2)}, {v(T+3)}")
    A(f"ds_write_b64 {v(v_addr_w)}, {v(T,2)} offset:{lds_base}")
    A("s_waitcnt lgkmcnt(0)\ns_barrier")
    for i in range(2):
        A(f"ds_read_b128 {v(T+4*i,4)}, {v(v_addr_r)} offset:{lds_base+16*i}")
    P = T + 8
    for i in range(2):
        A(f"ds_read_b128 {v(P+4*i,4)}, {v(v_addr_r)} offset:{lds_base+32+16*i}")
    A(f"v_pk_add_f32 {v(T,2)}, {v(T,2)}, {v(T+2,2)}\nv_pk_add_f32 {v(T+4,2)}, {v(T+4,2)}, {v(T+6,2)}")
    A(f"v_pk_add_f32 {v(P,2)}, {v(P,2)}, {v(P+2,2)}\nv_pk_add_f32 {v(P+4,2)}, {v(P+4,2)}, {v(P+6,2)}")
    A(f"v_pk_add_f32 {v(T,2)}, {v(T,2)}, {v(T+4,2)}\nv_pk_add_f32 {v(P,2)}, {v(P,2)}, {v(P+4,2)}")
    A(f"v_pk_add_f32 {v(T,2)}, {v(T,2)}, {v(P,2)}")
    A(f"v_mul_f32 {v(T)}, {fhex(1/512)}, {v(T)}\nv_mul_f32 {v(T+1)}, {fhex(1/512)}, {v(T+1)}")
    A(f"v_fma_f32 {v(T+1)}, -{v(T)}, {v(T)}, {v(T+1)}")
    A(f"v_max_f32 {v(T+1)}, 0, {v(T+1)}\nv_add_f32 {v(T+1)}, {fhex(1e-5)}, {v(T+1)}")
    A(f"v_rsq_f32 {v(v_r)}, {v(T+1)}")
    A(f"v_mul_f32 {v(v_mr)}, -{v(T)}, {v(v_r)}")
```

```python
import sys
sys.path.insert(0, "gen")
from common import *
def spin_variant(src, dst, terms, base_us=100, amp=10):
    s = open(src).read()
    lines = s.split('\n')
    hdr = [l if 'kernel=' in l else l.replace('@launch', '@launch kernel=' + NAME + '_kernel') for l in lines if l.startswith('; @launch')]
    body = '\n'.join(l for l in lines if not l.startswith('; @launch'))
    code = ["s_cmp_ge_u32 s2, 1", "s_cbranch_scc1 L_sp_end", "s_load_dwordx2 s[4:5], s[0:1], 88", "s_waitcnt lgkmcnt(0)",
            "s_mov_b32 s6, 0x10000000", "s_mov_b32 s7, 0x20000", "v_lshlrev_b32 v1, 8, v0",
            f"s_mov_b32 s8, {WS_PROF}", "v_mov_b32 v9, 0", "buffer_load_dword v2, v9, s[4:7], s8 offen", "s_waitcnt vmcnt(0)",
            "v_readfirstlane_b32 s10, v2", f"s_mov_b32 s11, {base_us*100}"]
    for (sign, k, i) in terms:
        code += [f"s_mov_b32 s8, {WS_PROF + k*0x40000 + 4*i}", "v_mov_b32 v4, 0"]
        for q in range(4):
            code += [f"buffer_load_dword v3, v1, s[4:7], s8 offen", "s_waitcnt vmcnt(0)", "v_subrev_u32 v3, s10, v3", "v_max_i32 v4, v4, v3", "s_add_u32 s8, s8, 16384"]
        code += ["s_mov_b32 s13, 0"]
        for l in range(64):
            code += [f"v_readlane_b32 s12, v4, {l}", "s_nop 1", "s_max_i32 s13, s13, s12"]
        code += [f"s_mul_i32 s13, s13, {amp*sign}", "s_add_u32 s11, s11, s13"]
    code += ["s_mov_b32 s14, 0", "L_sp_loop:", "s_memrealtime s[16:17]", "s_waitcnt lgkmcnt(0)", "s_sub_u32 s16, s16, s10", "s_add_u32 s14, s14, 1",
             "s_cmp_ge_u32 s14, 100000", "s_cbranch_scc1 L_sp_end", "s_cmp_lt_i32 s16, s11", "s_cbranch_scc1 L_sp_loop", "L_sp_end:", "s_endpgm"]
    k = ".globl sp_kernel\n.p2align 8\n.type sp_kernel,@function\nsp_kernel:\n" + "\n".join(code) + "\n" + kernel_desc("sp_kernel", 16, 16, 32)
    body = body.replace('.p2align 8\n.type L_tables', k + '.p2align 8\n.type L_tables')
    open(dst, 'w').write('\n'.join(hdr + ['; @launch kernel=sp_kernel grid=(1,1,1) block=(64,1,1) lds=0']) + '\n' + body)
if __name__ == "__main__":
    src = sys.argv[1]
    for n, i in enumerate(sys.argv[2:]):
        spin_variant(src, f"sp{n}.s", [(1, 0, int(i))])
```
